```python
import torch

def _softmax(x, axis=-1):
    return torch.softmax(x, dim=axis)
def _gelu(x):
    return torch.nn.functional.gelu(x, approximate="tanh")
def _silu(x):
    return torch.nn.functional.silu(x)
def _sigmoid(x):
    return torch.sigmoid(x)
def _layernorm(x, axis=-1, eps=1e-5):
    m = x.mean(dim=axis, keepdim=True)
    v = x.var(dim=axis, keepdim=True, unbiased=False)
    return (x - m) / torch.sqrt(v + eps)
def _scatter_add(tgt, idx, src, axis=0):
    return tgt.clone().index_add_(axis, idx, src)
def _segment_sum(src, seg, n):
    out = torch.zeros((n,) + src.shape[1:], dtype=src.dtype)
    return out.index_add_(0, seg, src)
def _pad(x, pw):
    flat = tuple(v for pair in reversed(pw) for v in pair)
    return torch.nn.functional.pad(x, flat)

kernel_name = 'recurrent_scan__sliding_block_cached__mixer_token_mlp__prompt'

def setup_inputs():

    _w = (lambda a: (lambda t: t.to(torch.bfloat16) if t.is_floating_point() else t)(torch.as_tensor(a)))
    def _A_setup():
        B, Sq, D = 1, 2048, 1024
        Hq, Hkv, Sk, Dh = 32, 4, 2048, 128
        assert Hq % Hkv == 0, (Hq, Hkv)
        return {
            "x": _w((lambda *s: torch.randn(*s, dtype=torch.bfloat16) * 0.05)(B, Sq, D)),
            "k_cache": _w((lambda *s: torch.randn(*s, dtype=torch.bfloat16) * 1.6)(B, Hkv, Sk, Dh)),
            "v_cache": _w((lambda *s: torch.randn(*s, dtype=torch.bfloat16) * 0.8)(B, Hkv, Sk, Dh)),
            "wq": _w((lambda *s: torch.randn(*s, dtype=torch.bfloat16) * 1.6)(D, Hq * Dh) * (D ** -0.5)),
            "wo": _w((lambda *s: torch.randn(*s, dtype=torch.bfloat16) * 0.8)(Hq * Dh, D) * ((Hq * Dh) ** -0.5)),
        }
    _A_in = _A_setup()

    def _B_setup():
        B, S, D, F = 1, 2048, 1024, 3584
        return {
            "x": _w((lambda *s: torch.randn(*s, dtype=torch.bfloat16) * 0.05)(B, S, D)),
            "w1": _w((lambda *s: torch.randn(*s, dtype=torch.bfloat16) * 1.6)(S, F) * (S ** -0.5)),
            "b1": _w((lambda *s: torch.randn(*s, dtype=torch.bfloat16) * 1.6)(F) * 0.02),
            "w2": _w((lambda *s: torch.randn(*s, dtype=torch.bfloat16) * 0.2)(F, S) * (F ** -0.5)),
            "b2": _w((lambda *s: torch.randn(*s, dtype=torch.bfloat16) * 0.2)(S) * 0.02),
        }
    _B_in = _B_setup()

    return {
        "A_x": _A_in["x"],
        "A_k_cache": _A_in["k_cache"],
        "A_v_cache": _A_in["v_cache"],
        "A_wq": _A_in["wq"],
        "A_wo": _A_in["wo"],
        "B_x": _B_in["x"],
        "B_w1": _B_in["w1"],
        "B_b1": _B_in["b1"],
        "B_w2": _B_in["w2"],
        "B_b2": _B_in["b2"],
    }

def reference(A_x, A_k_cache, A_v_cache, A_wq, A_wo, B_x, B_w1, B_b1, B_w2, B_b2):
    def _A_ref(x, k_cache, v_cache, wq, wo):
        B, Sq, D = x.shape
        Hq, Dh = 32, 128
        Hkv, Sk = k_cache.shape[1], k_cache.shape[2]
        W = min(4096, max(256, Sk // 4))
        rep = Hq // Hkv
        q = (lambda x, *d: x.permute(*d))((x @ wq).reshape(B, Sq, Hq, Dh), 0, 2, 1, 3)
        k = (lambda x, n, axis: torch.repeat_interleave(x, n, dim=axis))(k_cache[:, :, Sk - W:, :], rep, axis=1)
        v = (lambda x, n, axis: torch.repeat_interleave(x, n, dim=axis))(v_cache[:, :, Sk - W:, :], rep, axis=1)
        scores = torch.einsum("bhqd,bhkd->bhqk", q, k) * (Dh ** -0.5)
        p = _softmax(scores, axis=-1)
        o = torch.einsum("bhqk,bhkd->bhqd", p, v)
        return (lambda x, *d: x.permute(*d))(o, 0, 2, 1, 3).reshape(B, Sq, Hq * Dh) @ wo

    def _B_ref(x, w1, b1, w2, b2):
        B, S, D = x.shape
        h = _layernorm(x, axis=-1)
        u = torch.einsum("bsd,sf->bdf", h, w1) + b1
        u = _gelu(u)
        y = torch.einsum("bdf,fs->bds", u, w2) + b2
        return (lambda x, *d: x.permute(*d))(y, 0, 2, 1)

    x = A_x
    xn = _layernorm(x, axis=-1)
    s = _A_ref(xn, A_k_cache, A_v_cache, A_wq, A_wo)
    g = _silu(_B_ref(xn, B_w1, B_b1, B_w2, B_b2))
    return x + s * g
```

```python
class Asm:
    def __init__(self):
        self.lines = []
    def __call__(self, s):
        for l in s.strip("\n").split("\n"):
            l = l.rstrip()
            if l.strip():
                self.lines.append(l if l.endswith(":") and not l.startswith(" ") else "    " + l.strip())
    def label(self, name):
        self.lines.append(name + ":")
    def raw(self, s):
        self.lines.append(s)
    def text(self):
        return "\n".join(self.lines) + "\n"

def vr(b, n=1, p="v"):
    return f"{p}{b}" if n == 1 else f"{p}[{b}:{b+n-1}]"
def ar(b, n=1):
    return vr(b, n, "a")
def sr(b, n=1):
    return vr(b, n, "s")

def kernel_begin(A, name):
    A.raw(".text")
    A.raw(f".globl {name}")
    A.raw(".p2align 8")
    A.raw(f".type {name},@function")
    A.label(name)

def kernel_desc(name, nvgpr, accum, nsgpr=102):
    return f""".section .rodata,"a"
.p2align 6
.amdhsa_kernel {name}
  .amdhsa_next_free_vgpr {nvgpr}
  .amdhsa_next_free_sgpr {nsgpr}
  .amdhsa_accum_offset {accum}
  .amdhsa_group_segment_fixed_size 0
  .amdhsa_kernarg_size 104
  .amdhsa_user_sgpr_count 2
  .amdhsa_user_sgpr_kernarg_segment_ptr 1
  .amdhsa_system_sgpr_workgroup_id_x 1
  .amdhsa_float_denorm_mode_32 3
.end_amdhsa_kernel
"""

def srd(A, d, base_pair, off, nbytes):
    if off:
        A(f"s_add_u32 s{d}, s{base_pair}, {off & 0xffffffff:#x}")
        A(f"s_addc_u32 s{d+1}, s{base_pair+1}, 0")
    else:
        A(f"s_mov_b32 s{d}, s{base_pair}")
        A(f"s_mov_b32 s{d+1}, s{base_pair+1}")
    A(f"s_mov_b32 s{d+2}, {nbytes:#x}")
    A(f"s_mov_b32 s{d+3}, 0x00020000")

def interleave(backbone, fillers, start=0, every=1, per=1):
    out = [[b] for b in backbone]
    pos = start
    i = 0
    while i < len(fillers):
        p = min(pos, len(backbone) - 1)
        for _ in range(per):
            if i < len(fillers):
                f = fillers[i]; i += 1
                out[p].extend(f if isinstance(f, list) else [f])
        pos += every
    return out
```

```python
from asmlib import *
from layout import *
import os
EXP = os.environ.get('EXP', '')

V_LANE = 1
V_DMA = 2
V_ACT = 6
V_TMP = 7
V_TR = 8
V_W0 = 32
V_W1 = 64
V_ACC = 96
V_EP = 160
A_SENT = 0
A_ACT = 64
S_WSRD = 8
S_ASRD = 12
S_WOFF = 16
S_AOFF = 17
S_M0B = 18
S_CNT = 19
S_KG = 20
S_AH = 21
S_WAVE = 22

def gemm16_setup(A, P, n0_sreg, tile0_sreg, AP, NSL):
    t0, t1, t2, t3 = V_EP, V_EP+1, V_EP+2, V_EP+3
    A(f"""
    v_lshrrev_b32 v{t0}, 4, v{V_LANE}
    v_and_b32 v{t1}, 15, v{V_LANE}             ; p == j
    """)
    for q in range(4):
        A(f"""
        v_add_u32 v{t2}, {4*(q&1)}, v{t0}
        v_lshlrev_b32 v{t2}, 1, v{t2}
        v_xor_b32 v{t2}, v{t2}, v{t1}
        v_lshlrev_b32 v{t2}, 4, v{t2}
        v_add_u32 v{t3}, {4*q}, v{t0}
        v_mul_u32_u24 v{t3}, {P}, v{t3}
        v_add3_u32 v{V_DMA+q}, v{t2}, v{t3}, s{n0_sreg}
        """)
        if q:
            A(f"v_subrev_u32 v{V_DMA+q}, {q*1024}, v{V_DMA+q}")
    A(f"""
    s_lshl_b32 s{S_CNT}, s{S_AH}, 2
    s_add_u32 s{S_CNT}, s{S_CNT}, s{tile0_sreg}
    s_lshl_b32 s{S_CNT}, s{S_CNT}, 10
    v_lshlrev_b32 v{V_ACT}, 4, v{V_LANE}
    v_add_u32 v{V_ACT}, s{S_CNT}, v{V_ACT}
    s_lshl_b32 s{S_CNT}, s{S_KG}, 1
    s_add_u32 s{S_CNT}, s{S_CNT}, s{S_AH}
    s_mul_i32 s{S_WOFF}, s{S_CNT}, {32*P}
    s_sub_u32 s{S_WOFF}, s{S_WOFF}, {(112*P if 'noadv' not in EXP else -16*P) & 0xffffffff:#x}
    s_lshl_b32 s{S_M0B}, s{S_CNT}, 13
    s_mul_i32 s{S_AOFF}, s{S_KG}, {2*AP}
    """)
    b = V_EP + 4
    A(f"""
    v_lshrrev_b32 v{t2}, 2, v{t1}              ; r
    v_lshl_add_u32 v{t3}, v{t0}, 2, v{t2}      ; row = 4g + r
    v_and_b32 v{b}, 7, v{t3}                   ; k7
    s_lshl_b32 s{S_CNT}, s{S_KG}, 2
    v_xor_b32 v{b}, s{S_CNT}, v{b}             ; k7 ^ 4kg
    v_lshlrev_b32 v{t3}, 8, v{t3}              ; row*256
    v_and_b32 v{t2}, 3, v{t1}                  ; c2
    v_lshl_add_u32 v{t3}, v{t2}, 3, v{t3}      ; + c2*8  (= (c2>>1)*16 + (c2&1)*8)
    s_lshl_b32 s{S_CNT}, s{S_KG}, 14
    v_add_u32 v{t3}, s{S_CNT}, v{t3}
    """)
    nwin = (NSL + 1) // 2
    for t in range(8):
        A(f"v_xor_b32 v{t2}, {t}, v{b}")
        A(f"v_lshl_add_u32 v{V_TR+t}, v{t2}, 5, v{t3}")
        for w in range(1, nwin):
            A(f"v_add_u32 v{V_TR+8*w+t}, {w*65536}, v{V_TR+t}")

def dma_batch(rho, batch, P):
    f = []
    f.append([f"s_add_u32 m0, s{S_M0B}, {rho*32768 + batch*4096}"])
    inc = (112 if batch == 0 else 16)*P
    if 'noadv' in EXP: inc = -16*P if batch == 0 else 16*P
    f.append([f"s_add_u32 s{S_WOFF}, s{S_WOFF}, {inc & 0xffffffff:#x}"])
    for q in range(4):
        if 'nodma' in EXP: f.append(["s_nop 0"])
        else: f.append([f"buffer_load_dwordx4 v{V_DMA+q}, s[{S_WSRD}:{S_WSRD+3}], s{S_WOFF} offen offset:{q*1024} lds"])
    return f

def act_batch(rho, s, AP, flags=""):
    f = []
    for a in range(4):
        r = A_ACT + rho*32 + s*16 + a*4
        f.append([f"buffer_load_dwordx4 a[{r}:{r+3}], v{V_ACT}, s[{S_ASRD}:{S_ASRD+3}], s{S_AOFF} offen offset:{a*1024}{flags}"])
    inc = (1 if s == 0 else 3)*AP
    if 'noadv' in EXP: inc = AP if s == 0 else -AP
    if 'noact' in EXP: f = [["s_nop 0"]]*4
    f.append([f"s_add_u32 s{S_AOFF}, s{S_AOFF}, {inc & 0xffffffff:#x}"])
    return f

def tr_reads(rho, s, wset):
    f = []
    win = rho >> 1
    base = (rho & 1)*32768 + s*8192
    for t in range(8):
        r = wset + 4*t
        f.append([f"ds_read_b64_tr_b16 v[{r}:{r+1}], v{V_TR+8*win+t} offset:{base}"])
        f.append([f"ds_read_b64_tr_b16 v[{r+2}:{r+3}], v{V_TR+8*win+t} offset:{base+4096}"])
    if 'notr' in EXP: f = [["s_nop 0"]]*16
    return f

def mfmas(rho, s, wset, w_is_A):
    out = []
    for t in range(8):
        for a in range(4):
            w = f"v[{wset+4*t}:{wset+4*t+3}]"
            r = A_ACT + rho*32 + s*16 + a*4
            x = f"a[{r}:{r+3}]"
            if t < 4:
                c = V_ACC + (t*4 + a)*4
                d = f"v[{c}:{c+3}]"
            else:
                c = A_SENT + ((t-4)*4 + a)*4
                d = f"a[{c}:{c+3}]"
            if w_is_A:
                out.append(f"v_mfma_f32_16x16x32_bf16 {d}, {w}, {x}, {d}")
            else:
                out.append(f"v_mfma_f32_16x16x32_bf16 {d}, {x}, {w}, {d}")
    return out

def mix(tr, vm):
    out = []
    i = j = 0
    while i < len(tr) or j < len(vm):
        for _ in range(3):
            if i < len(tr): out.append(tr[i]); i += 1
        for _ in range(2):
            if j < len(vm): out.append(vm[j]); j += 1
    return out

def gemm16_main(A, tag, P, AP, nSS, NSL, w_is_A, act_flags=""):
    def emit(groups):
        for g in groups:
            for x in g: A(x)
    npre = min(3, NSL-1)
    for j in range(npre):
        emit(dma_batch(j, 0, P)); emit(act_batch(j, 0, AP, act_flags))
        emit(dma_batch(j, 1, P)); emit(act_batch(j, 1, AP, act_flags))
    for i in range(64):
        A(f"v_mov_b32 v{V_ACC+i}, 0")
        A(f"v_accvgpr_write_b32 a{A_SENT+i}, 0")
    A(f"s_mov_b32 s{S_CNT}, {nSS}")
    A(f"s_waitcnt vmcnt({16*(npre-1)})")
    for j in range(npre, NSL-1):
        emit(dma_batch(j, 0, P)); emit(act_batch(j, 0, AP, act_flags))
        emit(dma_batch(j, 1, P)); emit(act_batch(j, 1, AP, act_flags))
    emit(dma_batch(NSL-1, 0, P)); emit(act_batch(NSL-1, 0, AP, act_flags))
    A("s_barrier")
    emit(tr_reads(0, 0, V_W0))
    A("s_waitcnt lgkmcnt(0)")
    if 'stamp' in EXP and tag.startswith("sy"):
        A("s_memtime s[80:81]"); A("s_memrealtime s[82:83]"); A("s_waitcnt lgkmcnt(0)")
    A.raw(".p2align 6")
    A.label(f"{tag}_loop")
    for rho in range(NSL):
        prev = (rho - 1) % NSL
        nxt = (rho + 1) % NSL
        fill = mix(tr_reads(rho, 1, V_W1), dma_batch(prev, 1, P) + act_batch(prev, 1, AP, act_flags))
        for grp in interleave(mfmas(rho, 0, V_W0, w_is_A), fill):
            for x in grp: A(x)
        A(f"s_waitcnt vmcnt({16*(NSL-2)}) lgkmcnt(0)")
        if 'nobar' not in EXP: A("s_barrier")
        fill = mix(tr_reads(nxt, 0, V_W0), dma_batch(rho, 0, P) + act_batch(rho, 0, AP, act_flags))
        fill.append([f"s_sub_u32 s{S_CNT}, s{S_CNT}, 1"])
        for grp in interleave(mfmas(rho, 1, V_W1, w_is_A), fill):
            for x in grp: A(x)
        A(f"s_cmp_eq_u32 s{S_CNT}, 0")
        A("s_waitcnt lgkmcnt(0)")
        if rho == NSL - 1:
            A(f"s_cbranch_scc0 {tag}_loop")
        else:
            A(f"s_cbranch_scc1 {tag}_done")
    A.label(f"{tag}_done")
    if 'stamp' in EXP and tag.startswith("sy"):
        A("s_memtime s[84:85]"); A("s_memrealtime s[86:87]"); A("s_waitcnt lgkmcnt(0)")

def gemm16_reduce(A):
    A(f"""
    s_waitcnt vmcnt(0)
    s_barrier
    s_lshl_b32 s{S_CNT}, s{S_WAVE}, 14
    v_lshlrev_b32 v{V_TMP}, 4, v{V_LANE}
    v_add_u32 v{V_EP}, s{S_CNT}, v{V_TMP}
    s_xor_b32 s{S_CNT}, s{S_CNT}, 0x8000
    v_add_u32 v{V_EP+1}, s{S_CNT}, v{V_TMP}
    """)
    for i in range(16):
        A(f"ds_write_b128 v{V_EP}, a[{A_SENT+4*i}:{A_SENT+4*i+3}] offset:{i*1024}")
    A("s_waitcnt lgkmcnt(0)")
    A("s_barrier")
    for i in range(16):
        A(f"ds_read_b128 v[{V_W0+4*i}:{V_W0+4*i+3}], v{V_EP+1} offset:{i*1024}")
    for i in range(16):
        A(f"s_waitcnt lgkmcnt({15-i})")
        for r in range(4):
            A(f"v_add_f32 v{V_ACC+4*i+r}, v{V_ACC+4*i+r}, v{V_W0+4*i+r}")

def stamp_begin(A):
    if 'stamp' in EXP:
        A("s_memrealtime s[76:77]")
def stamp_end(A, ws_pair, slot):
    if 'stamp' not in EXP: return
    A("s_waitcnt vmcnt(0)")
    A("s_memrealtime s[88:89]")
    A("s_waitcnt lgkmcnt(0)")
    srd(A, 92, ws_pair, WS_STAMP + slot*65536, 65536)
    A(f"""
    s_sub_u32 s90, s84, s80
    v_mov_b32 v200, s76
    v_mov_b32 v201, s82
    v_mov_b32 v202, s86
    v_mov_b32 v203, s88
    v_mov_b32 v204, s90
    s_sub_u32 s91, s70, s76
    v_mov_b32 v205, s91
    v_mov_b32 v206, 0
    v_mov_b32 v207, 0
    s_lshl_b32 s90, s2, 2
    s_add_u32 s90, s90, s{S_WAVE}
    s_lshl_b32 s90, s90, 5
    v_mov_b32 v208, s90
    s_mov_b64 exec, 1
    buffer_store_dwordx4 v[200:203], v208, s[92:95], 0 offen
    buffer_store_dwordx4 v[204:207], v208, s[92:95], 0 offen offset:16
    """)
```

```python
from asmlib import *
from layout import *

def wave_allreduce_add(A, s, t):
    A(f"""
    s_nop 1
    v_add_f32_dpp v{t}, v{s}, v{s} quad_perm:[1,0,3,2] row_mask:0xf bank_mask:0xf
    s_nop 1
    v_add_f32_dpp v{s}, v{t}, v{t} quad_perm:[2,3,0,1] row_mask:0xf bank_mask:0xf
    s_nop 1
    v_add_f32_dpp v{t}, v{s}, v{s} row_half_mirror row_mask:0xf bank_mask:0xf
    s_nop 1
    v_add_f32_dpp v{s}, v{t}, v{t} row_mirror row_mask:0xf bank_mask:0xf
    s_nop 0
    v_mov_b32 v{t}, v{s}
    s_nop 1
    v_permlane16_swap_b32 v{s}, v{t}
    s_nop 0
    v_add_f32 v{s}, v{s}, v{t}
    s_nop 0
    v_mov_b32 v{t}, v{s}
    s_nop 1
    v_permlane32_swap_b32 v{s}, v{t}
    s_nop 0
    v_add_f32 v{s}, v{s}, v{t}
    """)

def rnd_bf16(A, d, s):
    A(f"v_cvt_pk_bf16_f32 v{d}, v{s}, v{s}")
    A(f"v_lshlrev_b32 v{d}, 16, v{d}")

def layernorm16(A, X, P, T):
    s, t, m, q = T, T+1, T+2, T+3
    D = T + 4
    A(f"v_add_f32 v{s}, v{X}, v{X+1}")
    A(f"v_add_f32 v{t}, v{X+2}, v{X+3}")
    for i in range(4, 16, 2):
        A(f"v_add_f32 v{s}, v{s}, v{X+i}")
        A(f"v_add_f32 v{t}, v{t}, v{X+i+1}")
    A(f"v_add_f32 v{s}, v{s}, v{t}")
    wave_allreduce_add(A, s, t)
    A(f"v_mul_f32 v{m}, 0x3a800000, v{s}")
    for i in range(16):
        A(f"v_sub_f32 v{D+i}, v{X+i}, v{m}")
    A(f"v_mul_f32 v{s}, v{D}, v{D}")
    A(f"v_mul_f32 v{t}, v{D+1}, v{D+1}")
    for i in range(2, 16, 2):
        A(f"v_fmac_f32 v{s}, v{D+i}, v{D+i}")
        A(f"v_fmac_f32 v{t}, v{D+i+1}, v{D+i+1}")
    A(f"v_add_f32 v{s}, v{s}, v{t}")
    rnd_bf16(A, m, m)
    wave_allreduce_add(A, s, t)
    A(f"v_mul_f32 v{q}, 0x3a800000, v{s}")
    rnd_bf16(A, q, q)
    A(f"v_add_f32 v{q}, 0x3727c5ac, v{q}")
    rnd_bf16(A, q, q)
    A(f"v_sqrt_f32 v{q}, v{q}")
    A("s_nop 0")
    rnd_bf16(A, q, q)
    A(f"v_rcp_f32 v{q}, v{q}")
    for i in range(16):
        A(f"v_sub_f32 v{D+i}, v{X+i}, v{m}")
    for i in range(8):
        A(f"v_cvt_pk_bf16_f32 v{P+i}, v{D+2*i}, v{D+2*i+1}")
    for i in range(8):
        A(f"v_lshlrev_b32 v{D+2*i}, 16, v{P+i}")
        A(f"v_and_b32 v{D+2*i+1}, 0xffff0000, v{P+i}")
    for i in range(16):
        A(f"v_mul_f32 v{D+i}, v{D+i}, v{q}")
    for i in range(8):
        A(f"v_cvt_pk_bf16_f32 v{P+i}, v{D+2*i}, v{D+2*i+1}")
    for i in range(8):
        A(f"v_lshlrev_b32 v{X+2*i}, 16, v{P+i}")
        A(f"v_and_b32 v{X+2*i+1}, 0xffff0000, v{P+i}")

LN_PITCH = 2112
LN_LDS = 2 * 8 * LN_PITCH

def gen_k0(A, name="ln_kernel"):
    kernel_begin(A, name)
    A(f"""
    s_cmp_ge_u32 s2, 256
    s_cbranch_scc1 {name}_end
    s_load_dwordx2 s[4:5], s[0:1], {KA_X}
    s_load_dwordx2 s[6:7], s[0:1], {KA_WS}
    v_and_b32 v1, 63, v0                 ; lane
    v_lshrrev_b32 v2, 6, v0
    s_lshr_b32 s20, s2, 2                ; ks
    v_readfirstlane_b32 s21, v2          ; i
    s_and_b32 s22, s2, 3                 ; g
    v_lshlrev_b32 v3, 4, v1              ; lane*16
    s_and_b32 s23, s21, 3
    s_lshr_b32 s24, s21, 2
    s_lshl_b32 s24, s24, 4
    s_add_u32 s23, s23, s24              ; (i&3) + 16*(i>>2)
    s_lshl_b32 s24, s22, 2
    s_add_u32 s23, s23, s24              ; + 4g
    s_lshl_b32 s24, s20, 5
    s_add_u32 s23, s23, s24              ; token
    s_lshl_b32 s23, s23, 11              ; token*2048
    s_waitcnt lgkmcnt(0)
    """)
    srd(A, 8, 4, 0, 2048*1024*2)
    A(f"""
    buffer_load_dwordx4 v[4:7], v3, s[8:11], s23 offen
    buffer_load_dwordx4 v[8:11], v3, s[8:11], s23 offen offset:1024
    """)
    srd(A, 12, 6, WS_XN, XN_BYTES)
    srd(A, 16, 6, WS_HT, HT_BYTES)
    srd(A, 28, 6, WS_FLAG, FLAG_BYTES)
    A(f"""
    s_lshl_b32 s25, s2, 7
    v_mov_b32 v12, 0
    v_mov_b32 v13, s25
    v_cmp_eq_u32 vcc, 0, v0
    s_and_saveexec_b64 s[26:27], vcc
    s_cbranch_execz {name}_noflag
    buffer_store_dword v12, v13, s[28:31], 0 offen
{name}_noflag:
    s_mov_b64 exec, s[26:27]
    s_mul_i32 s25, s21, {LN_PITCH}
    v_add_u32 v14, s25, v3
    s_waitcnt vmcnt(0)
    """)
    X = 16
    for i in range(8):
        A(f"v_lshlrev_b32 v{X+2*i}, 16, v{4+i}")
        A(f"v_and_b32 v{X+2*i+1}, 0xffff0000, v{4+i}")
    P = 32; T = 48
    layernorm16(A, X, P, T)
    A(f"ds_write_b128 v14, v[{P}:{P+3}]")
    A(f"ds_write_b128 v14, v[{P+4}:{P+7}] offset:1024")
    P2 = 40
    layernorm16(A, X, P2, T)
    A(f"ds_write_b128 v14, v[{P2}:{P2+3}] offset:{8*LN_PITCH}")
    A(f"ds_write_b128 v14, v[{P2+4}:{P2+7}] offset:{8*LN_PITCH+1024}")
    A(f"""
    v_and_b32 v16, 7, v1                 ; i
    v_lshrrev_b32 v17, 3, v1             ; l>>3 (0..7)
    s_lshl_b32 s25, s21, 4
    v_add_u32 v17, s25, v17              ; c (for e=0)
    v_mul_u32_u24 v18, {LN_PITCH}, v16
    v_lshl_add_u32 v18, v17, 4, v18
    v_lshrrev_b32 v19, 1, v17
    v_lshlrev_b32 v19, 16, v19
    v_and_b32 v20, 1, v17
    v_lshlrev_b32 v20, 9, v20
    v_add_u32 v19, v19, v20
    v_lshl_add_u32 v19, v16, 4, v19
    s_lshl_b32 s25, s20, 10
    s_lshl_b32 s26, s22, 7
    s_add_u32 s25, s25, s26              ; ks*1024 + g*128
    v_and_b32 v21, 15, v1
    v_lshrrev_b32 v22, 2, v21            ; r
    v_and_b32 v23, 3, v21                ; c'
    v_lshrrev_b32 v24, 4, v1             ; l>>4
    s_lshl_b32 s26, s21, 3               ; 8w
    v_add_u32 v24, s26, v24              ; dt (e=0)
    v_mul_u32_u24 v25, {LN_PITCH}, v22
    v_lshl_add_u32 v25, v24, 5, v25
    v_lshl_add_u32 v25, v23, 3, v25
    v_lshlrev_b32 v26, 10, v24
    v_lshl_add_u32 v26, v21, 4, v26
    s_lshl_b32 s26, s20, 16
    s_lshl_b32 s27, s22, 8
    s_add_u32 s26, s26, s27
    s_waitcnt lgkmcnt(0)
    s_barrier
    ds_read_b128 v[32:35], v18
    ds_read_b128 v[36:39], v18 offset:128
    ds_read_b64_tr_b16 v[40:41], v25 offset:{8*LN_PITCH}
    ds_read_b64_tr_b16 v[42:43], v25 offset:{8*LN_PITCH + 4*LN_PITCH}
    ds_read_b64_tr_b16 v[44:45], v25 offset:{8*LN_PITCH + 128}
    ds_read_b64_tr_b16 v[46:47], v25 offset:{8*LN_PITCH + 4*LN_PITCH + 128}
    s_add_u32 s27, s25, {4*65536}
    s_add_u32 s24, s26, 4096
    s_waitcnt lgkmcnt(5)
    buffer_store_dwordx4 v[32:35], v19, s[12:15], s25 offen
    s_waitcnt lgkmcnt(4)
    buffer_store_dwordx4 v[36:39], v19, s[12:15], s27 offen
    s_waitcnt lgkmcnt(2)
    buffer_store_dwordx4 v[40:43], v26, s[16:19], s26 offen
    s_waitcnt lgkmcnt(0)
    buffer_store_dwordx4 v[44:47], v26, s[16:19], s24 offen
{name}_end:
    s_endpgm
    """)
    return kernel_desc(name, 72, 72, 40)
```

```python
from asmlib import *
from layout import *
from gen_gemm import *
from gen_k2 import wave_ids, LOG2E
import struct

K1_LDS = 160*1024
def f2u(x): return struct.unpack("<I", struct.pack("<f", x))[0]
import math
QSCALE = f2u(math.log2(math.e) / math.sqrt(128.0))

class VM:
    def __init__(self): self.ops = []
    def issue(self, tag): self.ops.append(tag)
    def wait(self, *tags):
        last = max((i for i, t in enumerate(self.ops) if t in tags), default=-1)
        n = len(self.ops) - 1 - last
        assert n <= 63, n
        return f"s_waitcnt vmcnt({n})"

def u_epilogue(A, S_FT, S_DT, VB):
    A(f"""
    s_lshl_b32 s62, s{S_FT}, 2
    s_lshl_b32 s63, s{S_KG}, 1
    s_add_u32 s62, s62, s63
    s_lshl_b32 s62, s62, 16
    s_lshl_b32 s63, s{S_DT}, 13
    s_add_u32 s62, s62, s63
    s_lshl_b32 s63, s{S_AH}, 12
    s_add_u32 s62, s62, s63
    s_add_u32 s63, s62, 65536
    """)
    c1 = 2.0*math.sqrt(2.0/math.pi)*math.log2(math.e)
    c2 = c1*0.044715
    A(f"s_mov_b32 s57, {f2u(c2):#x}")
    A(f"v_mov_b32 v{V_EP+40}, {f2u(c1):#x}")
    BF = V_EP + 16
    for x in range(4):
        for p in range(2):
            A(f"v_lshlrev_b32 v{BF+4*x+2*p}, 16, v{VB+2*x+p}")
            A(f"v_and_b32 v{BF+4*x+2*p+1}, 0xffff0000, v{VB+2*x+p}")
    T = V_EP
    cnt = 0
    for j in range(2):
        for a in range(4):
            o = V_W0 + (cnt % 4)*4; cnt += 1
            regs = []; bias = []
            for half in range(2):
                x = 2*j + half
                acc = V_ACC + (x*4 + a)*4
                regs += [acc + r for r in range(4)]
                bias += [BF + 4*x + r for r in range(4)]
            for i, r in enumerate(regs): A(f"v_add_f32 v{r}, v{r}, v{bias[i]}")
            for i, r in enumerate(regs): A(f"v_mul_f32 v{T+i}, v{r}, v{r}")
            for i, r in enumerate(regs): A(f"v_fma_f32 v{T+i}, v{T+i}, s57, v{V_EP+40}")
            for i, r in enumerate(regs): A(f"v_mul_f32 v{T+i}, v{T+i}, v{r}")
            for i, r in enumerate(regs): A(f"v_exp_f32 v{T+i}, -v{T+i}")
            for i, r in enumerate(regs): A(f"v_add_f32 v{T+i}, 1.0, v{T+i}")
            for i, r in enumerate(regs): A(f"v_rcp_f32 v{T+i}, v{T+i}")
            for i, r in enumerate(regs): A(f"v_mul_f32 v{T+i}, v{T+i}, v{r}")
            for i in range(4): A(f"v_cvt_pk_bf16_f32 v{o+i}, v{T+2*i}, v{T+2*i+1}")
            A(f"buffer_store_dwordx4 v[{o}:{o+3}], v{V_TMP}, s[40:43], s{62+j} offen offset:{a*1024}")

Q_DMA = 2
Q_ACT = 6
Q_TR = 8
Q_W = [32, 48]
Q_ACC = 96
Q_RING = 96*1024
NSQ = 4
VQ = 32
VS = [96, 128]
VMB = 160
VP = [192, 208]
VL = 224
VNM = 228
VT = 230
KA_ = 8
VA_ = 16
VKD = 20
VVD = 24
VOS = 25
A_O = 0; A_KF = 128; A_VF = 160
S_KSRD = 44; S_VSRD = 48; S_OSRD = 52

def gen_k1(A, name="att_kernel", NSL=4):
    kernel_begin(A, name)
    S_FT, S_DT, S_RB, S_HEAD, S_N0, S_T0, S_GRP = 24, 25, 26, 27, 28, 29, 23
    A(f"""
    s_cmp_ge_u32 s2, 256
    s_cbranch_scc1 {name}_end
    s_load_dwordx2 s[4:5], s[0:1], {KA_WS}
    s_load_dwordx2 s[6:7], s[0:1], {KA_W1}
    s_load_dwordx2 s[30:31], s[0:1], {KA_B1}
    s_load_dwordx2 s[32:33], s[0:1], {KA_WQ}
    s_load_dwordx2 s[34:35], s[0:1], {KA_K}
    s_load_dwordx2 s[36:37], s[0:1], {KA_V}
    """)
    stamp_begin(A)
    wave_ids(A)
    A(f"""
    s_and_b32 s3, s2, 7                  ; xcd
    s_lshr_b32 s38, s2, 3                ; j
    s_lshr_b32 s{S_GRP}, s3, 1           ; group
    s_and_b32 s39, s3, 1                 ; half
    s_lshl_b32 s39, s39, 2
    s_lshr_b32 s{S_RB}, s38, 3
    s_add_u32 s{S_RB}, s{S_RB}, s39
    s_and_b32 s{S_HEAD}, s38, 7
    s_lshl_b32 s56, s{S_GRP}, 3
    s_add_u32 s{S_HEAD}, s{S_HEAD}, s56  ; head
    s_mul_i32 s{S_FT}, s{S_GRP}, 7
    s_lshr_b32 s56, s38, 2
    s_add_u32 s{S_FT}, s{S_FT}, s56
    s_and_b32 s{S_DT}, s38, 3
    s_add_u32 s{S_DT}, s{S_DT}, s39
    s_waitcnt lgkmcnt(0)
    s_cmp_ge_u32 s38, 28
    s_cbranch_scc1 {name}_q
    """)
    srd(A, S_WSRD, 6, 0, 2048*3584*2)
    srd(A, S_ASRD, 4, WS_HT, HT_BYTES)
    srd(A, 40, 4, WS_U, U_BYTES)
    srd(A, 48, 30, 0, 3584*2)
    VB = 224
    A(f"""
    s_lshl_b32 s{S_N0}, s{S_FT}, 8
    s_lshl_b32 s{S_T0}, s{S_DT}, 3
    v_lshrrev_b32 v{V_EP}, 4, v{V_LANE}
    v_lshlrev_b32 v{V_EP}, 3, v{V_EP}
    s_lshl_b32 s56, s{S_KG}, 7
    s_add_u32 s56, s56, s{S_N0}
    """)
    for x in range(4):
        A(f"buffer_load_dwordx2 v[{VB+2*x}:{VB+2*x+1}], v{V_EP}, s[48:51], s56 offen offset:{x*32}")
    gemm16_setup(A, 7168, S_N0, S_T0, 65536, NSL)
    gemm16_main(A, name + "_u", 7168, 65536, 16, NSL, True)
    gemm16_reduce(A)
    u_epilogue(A, S_FT, S_DT, VB)
    A("s_barrier")
    A.label(f"{name}_q")
    P = 8192
    srd(A, S_WSRD, 32, 0, 1024*4096*2)
    srd(A, S_ASRD, 4, WS_XN, XN_BYTES)
    A(f"""
    s_lshl_b32 s56, s{S_GRP}, 19
    s_add_u32 s56, s56, {1536*256}
    s_add_u32 s{S_KSRD}, s34, s56
    s_addc_u32 s{S_KSRD+1}, s35, 0
    s_mov_b32 s{S_KSRD+2}, 0x20000
    s_mov_b32 s{S_KSRD+3}, 0x00020000
    s_add_u32 s{S_VSRD}, s36, s56
    s_addc_u32 s{S_VSRD+1}, s37, 0
    s_mov_b32 s{S_VSRD+2}, 0x20000
    s_mov_b32 s{S_VSRD+3}, 0x00020000
    """)
    srd(A, S_OSRD, 4, WS_O, O_BYTES)
    t0, t1, t2, t3, t4 = VT, VT+1, VT+2, VT+3, VT+4
    A(f"""
    v_lshrrev_b32 v{t0}, 4, v{V_LANE}          ; G = i>>4
    v_and_b32 v{t1}, 15, v{V_LANE}             ; p / j
    v_lshlrev_b32 v{t2}, 2, v{t0}
    v_xor_b32 v{t2}, v{t2}, v{t1}
    v_lshlrev_b32 v{t2}, 4, v{t2}
    v_lshl_add_u32 v{VVD}, v{t0}, 8, v{t2}
    v_lshl_add_u32 v{t2}, v{t0}, 13, v{t2}     ; + G*P
    s_lshl_b32 s56, s{S_HEAD}, 8
    v_add_u32 v{Q_DMA}, s56, v{t2}
    v_add_u32 v{Q_DMA+1}, {4*P-1024}, v{Q_DMA}
    v_add_u32 v{Q_DMA+2}, {2*(4*P-1024)}, v{Q_DMA}
    v_add_u32 v{Q_DMA+3}, {3*(4*P-1024)}, v{Q_DMA}
    s_lshl_b32 s56, s{S_RB}, 2
    s_add_u32 s56, s56, s{S_WAVE}
    s_lshl_b32 s56, s56, 11
    v_lshlrev_b32 v{Q_ACT}, 4, v{V_LANE}
    v_add_u32 v{Q_ACT}, s56, v{Q_ACT}
    s_mul_i32 s{S_WOFF}, s{S_WAVE}, {16*P}
    s_sub_u32 s{S_WOFF}, s{S_WOFF}, {64*P}
    s_lshl_b32 s{S_M0B}, s{S_WAVE}, 12
    s_mov_b32 s{S_AOFF}, 0
    """)
    vm = VM()
    def q_dma(st):
        f = [[f"s_add_u32 m0, s{S_M0B}, {Q_RING + (st % NSQ)*16384}"]]
        f.append([f"s_add_u32 s{S_WOFF}, s{S_WOFF}, {64*P}"])
        for q in range(4):
            f.append([("W", st), f"buffer_load_dwordx4 v{Q_DMA+q}, s[{S_WSRD}:{S_WSRD+3}], s{S_WOFF} offen offset:{q*1024} lds"])
        return f
    def q_act(st, ks):
        f = []
        for qt in range(2):
            r = (st % NSQ)*32 + ks*8 + qt*4
            f.append([("X", st), f"buffer_load_dwordx4 a[{r}:{r+3}], v{Q_ACT}, s[{S_ASRD}:{S_ASRD+3}], s{S_AOFF} offen offset:{qt*1024}"])
        f.append([f"s_add_u32 s{S_AOFF}, s{S_AOFF}, 65536"])
        return f
    def kv_dma(kind, blk):
        base = (0 if kind == "K" else 65536) + (blk % 4)*16384
        srdr = S_KSRD if kind == "K" else S_VSRD
        f = [[f"s_add_u32 m0, s{S_M0B}, {base}"], [f"s_add_u32 s58, s{S_M0B}, {blk*16384}"]]
        for q in range(4):
            v = VKD + q if kind == "K" else VVD
            f.append([(kind, blk), f"buffer_load_dwordx4 v{v}, s[{srdr}:{srdr+3}], s58 offen offset:{q*1024} lds"])
        return f
    def emit(groups):
        for g in groups:
            for x in g:
                if isinstance(x, tuple): vm.issue(x)
                else: A(x)
    for st in range(NSQ - 1):
        emit(q_dma(st))
        for ks in range(4): emit(q_act(st, ks))
    A(f"""
    v_lshrrev_b32 v{t2}, 2, v{t1}              ; r
    v_and_b32 v{t3}, 3, v{t1}                  ; c
    v_lshrrev_b32 v{t4}, 1, v{t0}              ; h
    v_lshl_add_u32 v{VT+5}, v{t4}, 3, v{t2}    ; 8h + r
    v_lshlrev_b32 v{VT+5}, 8, v{VT+5}
    v_and_b32 v{VT+6}, 1, v{t0}
    v_lshl_add_u32 v{VT+5}, v{VT+6}, 5, v{VT+5}   ; + 2(G&1)*16
    v_and_b32 v{VT+7}, 1, v{t3}
    v_lshl_add_u32 v{VT+8}, v{VT+7}, 4, v{VT+5}   ; + (c&1)*16
    v_lshrrev_b32 v{VT+7}, 1, v{t3}
    v_lshl_add_u32 v{VT+8}, v{VT+7}, 3, v{VT+8}   ; + (c>>1)*8
    v_add_u32 v{VT+8}, {Q_RING}, v{VT+8}
    v_lshl_add_u32 v{VT+9}, v{t4}, 2, v{t2}
    v_lshlrev_b32 v{VT+9}, 8, v{VT+9}
    v_lshl_add_u32 v{VT+9}, v{VT+6}, 5, v{VT+9}
    v_lshl_add_u32 v{VT+9}, v{t3}, 3, v{VT+9}     ; + c*8
    v_add_u32 v{VT+9}, 65536, v{VT+9}
    """)
    for dt in range(4):
        A(f"v_xor_b32 v{VT+10}, {dt}, v{t2}")
        A(f"v_lshl_add_u32 v{Q_TR+dt+18}, v{VT+10}, 6, v{VT+8}")
        A(f"v_lshl_add_u32 v{VA_+dt}, v{VT+10}, 6, v{VT+9}")
    QT = Q_TR + 18
    for q in range(4):
        A(f"""
        v_add_u32 v{VT+10}, {4*q}, v{t0}
        v_xor_b32 v{VT+10}, v{VT+10}, v{t1}
        v_lshlrev_b32 v{VT+10}, 4, v{VT+10}
        v_lshl_add_u32 v{VKD+q}, v{t0}, 8, v{VT+10}
        """)
    A(f"""
    v_and_b32 v{VT+10}, 31, v{V_LANE}
    v_lshlrev_b32 v{VT+11}, 8, v{VT+10}
    v_xor_b32 v{VT+12}, v{t4}, v{t1}           ; h ^ (key&15)
    """)
    for ks in range(8):
        A(f"v_xor_b32 v{VT+13}, {2*ks}, v{VT+12}")
        A(f"v_lshl_add_u32 v{KA_+ks}, v{VT+13}, 4, v{VT+11}")
    A(f"""
    v_bfe_u32 v{VT+11}, v{VT+10}, 2, 1
    v_lshlrev_b32 v{VT+11}, 10, v{VT+11}
    v_lshl_add_u32 v{VT+11}, v{t4}, 8, v{VT+11}
    v_lshrrev_b32 v{VT+12}, 3, v{VT+10}
    v_lshl_add_u32 v{VT+11}, v{VT+12}, 6, v{VT+11}
    v_and_b32 v{VT+12}, 3, v{VT+10}
    v_lshl_add_u32 v{VT+11}, v{VT+12}, 4, v{VT+11}
    s_lshl_b32 s56, s{S_RB}, 2
    s_add_u32 s56, s56, s{S_WAVE}
    s_lshl_b32 s56, s56, 12
    v_add_u32 v{VOS}, s56, v{VT+11}
    """)
    for i in range(128):
        A(f"v_mov_b32 v{Q_ACC+i}, 0")
    def q_tr(st, ks, wset):
        f = []
        base = (st % NSQ)*16384 + ks*4096
        for dt in range(4):
            r = wset + 4*dt
            f.append([f"ds_read_b64_tr_b16 v[{r}:{r+1}], v{QT+dt} offset:{base}"])
            f.append([f"ds_read_b64_tr_b16 v[{r+2}:{r+3}], v{QT+dt} offset:{base+1024}"])
        return f
    def q_mfma(st, ks, wset):
        out = []
        for dt in range(4):
            for qt in range(2):
                r = (st % NSQ)*32 + ks*8 + qt*4
                c = Q_ACC + (dt*2 + qt)*16
                out.append(f"v_mfma_f32_32x32x16_bf16 v[{c}:{c+15}], v[{wset+4*dt}:{wset+4*dt+3}], a[{r}:{r+3}], v[{c}:{c+15}]")
        return out
    A(vm.wait(("W", 0), ("X", 0)))
    A("s_barrier")
    emit(q_tr(0, 0, Q_W[0]))
    if 'stamp' in EXP:
        A("s_memtime s[80:81]"); A("s_memrealtime s[82:83]")
    A("s_waitcnt lgkmcnt(0)")
    NST = 16
    kvq = [("K", 0), ("K", 1), ("V", 0), ("K", 2), ("V", 1), ("K", 3)]
    for st in range(NST):
        for ks in range(4):
            cur = Q_W[ks & 1]; nx = Q_W[(ks+1) & 1]
            fill = []
            if ks < 3: tr = q_tr(st, ks+1, nx)
            elif st + 1 < NST: tr = q_tr(st+1, 0, nx)
            else: tr = []
            vmops = []
            tgt = st + NSQ - 1
            if tgt < NST:
                if ks == 0: vmops += q_dma(tgt)
                vmops += q_act(tgt, ks)
            elif ks in (0, 2) and kvq:
                vmops += kv_dma(*kvq.pop(0))
            fill = mix(tr, vmops)
            for grp in interleave(q_mfma(st, ks, cur), fill, per=2):
                emit([grp])
            if ks == 2 and st + 1 < NST:
                A(vm.wait(("W", st+1), ("X", st+1)).replace(")", ") lgkmcnt(0)"))
                A("s_barrier")
            else:
                A("s_waitcnt lgkmcnt(0)")
    if 'stamp' in EXP:
        A("s_memrealtime s[70:71]")
    A("s_barrier")
    emit(kv_dma("V", 2)); emit(kv_dma("V", 3))
    A(f"s_mov_b32 s57, {QSCALE:#x}")
    A("s_nop 7")
    for qt in range(2):
        for ks in range(8):
            c = Q_ACC + ((ks >> 1)*2 + qt)*16 + 8*(ks & 1)
            d = VQ + (qt*8 + ks)*4
            for i in range(8): A(f"v_mul_f32 v{c+i}, s57, v{c+i}")
            for i in range(4): A(f"v_cvt_pk_bf16_f32 v{d+i}, v{c+2*i}, v{c+2*i+1}")
    for i in range(128): A(f"v_accvgpr_write_b32 a{A_O+i}, 0")
    for i in range(4): A(f"v_mov_b32 v{VL+i}, 0")
    def k_reads(n):
        base = ((n >> 1) % 4)*16384 + (n & 1)*8192
        return [[f"ds_read_b128 a[{A_KF+4*ks}:{A_KF+4*ks+3}], v{KA_+ks} offset:{base}"] for ks in range(8)]
    def v_reads(n):
        base = ((n >> 1) % 4)*16384 + (n & 1)*8192
        f = []
        for kk in range(2):
            for dt in range(4):
                r = A_VF + (kk*4 + dt)*4
                f.append([f"ds_read_b64_tr_b16 a[{r}:{r+1}], v{VA_+dt} offset:{base + kk*4096}"])
                f.append([f"ds_read_b64_tr_b16 a[{r+2}:{r+3}], v{VA_+dt} offset:{base + kk*4096 + 2048}"])
        return f
    def qk(n, czero=False):
        out = []
        for ks in range(8):
            for qt in range(2):
                d = VS[n & 1] + qt*16
                q = VQ + (qt*8 + ks)*4
                c = f"v[{d}:{d+15}]" if ks else ("0" if czero else f"v[{VMB+16*qt}:{VMB+16*qt+15}]")
                out.append(f"v_mfma_f32_32x32x16_bf16 v[{d}:{d+15}], a[{A_KF+4*ks}:{A_KF+4*ks+3}], v[{q}:{q+3}], {c}")
        return out
    def pv(n):
        out = []
        for kk in range(2):
            for dt in range(4):
                for qt in range(2):
                    o = A_O + (dt*2 + qt)*16
                    r = A_VF + (kk*4 + dt)*4
                    p = VP[n & 1] + qt*8 + kk*4
                    out.append(f"v_mfma_f32_32x32x16_bf16 a[{o}:{o+15}], a[{r}:{r+3}], v[{p}:{p+3}], a[{o}:{o+15}]")
        return out
    def softmax(n):
        f = []
        pend = []
        for qt in range(2):
            s = VS[n & 1] + qt*16
            p = VP[n & 1] + qt*8
            for i in range(0, 16, 2):
                g = [f"v_exp_f32 v{s+i}, v{s+i}", f"v_exp_f32 v{s+i+1}, v{s+i+1}"]
                f.append(g + pend)
                pend = [f"v_add_f32 v{VL+2*qt}, v{VL+2*qt}, v{s+i}", f"v_add_f32 v{VL+2*qt+1}, v{VL+2*qt+1}, v{s+i+1}",
                        f"v_cvt_pk_bf16_f32 v{p+i//2}, v{s+i}, v{s+i+1}"]
        f.append(["s_nop 0"] + pend)
        return f
    A(vm.wait(("K", 0), ("K", 1), ("V", 0)))
    A("s_barrier")
    emit(k_reads(0))
    A("s_waitcnt lgkmcnt(0)")
    for x in qk(0, czero=True): A(x)
    emit(k_reads(1))
    A("s_nop 7"); A("s_nop 3")
    for qt in range(2):
        s = VS[0] + qt*16
        m = VNM + qt
        A(f"v_max3_f32 v{m}, v{s}, v{s+1}, v{s+2}")
        for i in range(3, 15, 2):
            A(f"v_max3_f32 v{m}, v{m}, v{s+i}, v{s+i+1}")
        A(f"v_max_f32 v{m}, v{m}, v{s+15}")
    A(f"""
    v_mov_b32 v{VT}, v{VNM}
    v_mov_b32 v{VT+1}, v{VNM+1}
    s_nop 1
    v_permlane32_swap_b32 v{VNM}, v{VT}
    v_permlane32_swap_b32 v{VNM+1}, v{VT+1}
    s_nop 0
    v_max_f32 v{VNM}, v{VNM}, v{VT}
    v_max_f32 v{VNM+1}, v{VNM+1}, v{VT+1}
    v_sub_f32 v{VNM}, 0, v{VNM}
    v_sub_f32 v{VNM+1}, 0, v{VNM+1}
    """)
    for qt in range(2):
        for i in range(16):
            A(f"v_mov_b32 v{VMB+16*qt+i}, v{VNM+qt}")
            A(f"v_add_f32 v{VS[0]+16*qt+i}, v{VS[0]+16*qt+i}, v{VNM+qt}")
    A("s_waitcnt lgkmcnt(0)")
    NT = 16
    for n in range(NT + 1):
        if n % 2 == 0 and n >= 2:
            c = n // 2
            need = []
            if c + 1 < 8: need.append(("K", c+1))
            if c < 8: need.append(("V", c))
            if need: A(vm.wait(*need))
            A("s_barrier")
        sm = softmax(n) if n < NT else []
        h1 = sm[:len(sm)//2]; h2 = sm[len(sm)//2:]
        bb = qk(n+1) if n + 1 < NT else []
        ld = v_reads(n-1) if n >= 1 else []
        vmops = []
        if n % 2 == 0 and n >= 2:
            c = n // 2
            if c + 4 < 8: vmops += kv_dma("K", c + 4) if False else []
            if c + 4 < 8: vmops += kv_dma("K", c + 4)
            if c >= 2 and c + 2 < 8: vmops += kv_dma("V", c + 2)
        if n == 1:
            pass
        if n == 2: vmops = kv_dma("K", 4) + vmops
        def place(bb, groups):
            if not bb:
                emit(groups); return
            k = len(groups)
            out = [[b] for b in bb]
            for i, g in enumerate(groups):
                out[min(len(bb)-1, i*len(bb)//max(k,1))].extend(g)
            emit(out)
        def merge(a, b):
            out = []
            ia = ib = 0
            while ia < len(a) or ib < len(b):
                ra = ia / max(len(a), 1); rb = ib / max(len(b), 1)
                if ia < len(a) and (ra <= rb*0.75 or ib >= len(b)): out.append(a[ia]); ia += 1
                elif ib < len(b): out.append(b[ib]); ib += 1
                else: out.append(a[ia]); ia += 1
            return out
        place(bb, merge(ld, h1))
        A("s_waitcnt lgkmcnt(0)")
        bb = pv(n-1) if n >= 1 else []
        ld = k_reads(n+2) if n + 2 < NT else []
        place(bb, merge(ld + vmops, h2))
        A("s_waitcnt lgkmcnt(0)")
    if 'stamp' in EXP:
        A("s_memtime s[84:85]"); A("s_memrealtime s[86:87]"); A("s_waitcnt lgkmcnt(0)")
    A.label(f"{name}_fin")
    A(f"""
    v_add_f32 v{VL}, v{VL}, v{VL+1}
    v_add_f32 v{VL+2}, v{VL+2}, v{VL+3}
    s_nop 0
    v_mov_b32 v{VL+1}, v{VL}
    v_mov_b32 v{VL+3}, v{VL+2}
    s_nop 1
    v_permlane32_swap_b32 v{VL}, v{VL+1}
    v_permlane32_swap_b32 v{VL+2}, v{VL+3}
    s_nop 0
    v_add_f32 v{VL}, v{VL}, v{VL+1}
    v_add_f32 v{VL+2}, v{VL+2}, v{VL+3}
    v_rcp_f32 v{VL+1}, v{VL}
    v_rcp_f32 v{VL+3}, v{VL+2}
    s_lshl_b32 s56, s{S_HEAD}, 19
    """)
    cnt = 0
    for dt in range(4):
        if dt: A(f"s_add_u32 s56, s56, 131072")
        for qt in range(2):
            o = A_O + (dt*2 + qt)*16
            T = 96 + (cnt % 2)*32; cnt += 1
            for i in range(16): A(f"v_accvgpr_read_b32 v{T+i}, a{o+i}")
            for i in range(16): A(f"v_mul_f32 v{T+i}, v{T+i}, v{VL+1+2*qt}")
            for pc in range(2):
                d = T + 16 + pc*4
                for e, b in enumerate((4*pc, 4*pc+2, 8+4*pc, 8+4*pc+2)):
                    A(f"v_cvt_pk_bf16_f32 v{d+e}, v{T+b}, v{T+b+1}")
                A(f"buffer_store_dwordx4 v[{d}:{d+3}], v{VOS}, s[{S_OSRD}:{S_OSRD+3}], s56 offen offset:{qt*2048 + pc*512}")
    if 'stamp' in EXP:
        stamp_end(A, 4, 1)
    A(f"""
{name}_end:
    s_endpgm
    """)
    return kernel_desc(name, 512, 256, 100)
```

```python
from asmlib import *
from layout import *
from gen_gemm import *

LOG2E = 0x3fb8aa3b
V_X = 224

def wave_ids(A):
    A(f"""
    v_and_b32 v{V_LANE}, 63, v0
    v_lshrrev_b32 v{V_TMP}, 6, v0
    s_nop 0
    v_readfirstlane_b32 s{S_WAVE}, v{V_TMP}
    s_nop 3
    s_lshr_b32 s{S_KG}, s{S_WAVE}, 1
    s_and_b32 s{S_AH}, s{S_WAVE}, 1
    """)

def gen_k2(A, name="sy_kernel", NSL=4):
    kernel_begin(A, name)
    S_TT, S_CT, S_TILE, S_N0, S_T0 = 24, 25, 26, 27, 28
    A(f"""
    s_cmp_ge_u32 s2, 256
    s_cbranch_scc1 {name}_end
    s_load_dwordx2 s[4:5], s[0:1], {KA_WS}
    s_load_dwordx2 s[6:7], s[0:1], {KA_WO}
    s_load_dwordx2 s[30:31], s[0:1], {KA_W2}
    s_load_dwordx2 s[32:33], s[0:1], {KA_X}
    s_load_dwordx2 s[34:35], s[0:1], {KA_OUT}
    s_load_dwordx2 s[36:37], s[0:1], {KA_B2}
    """)
    stamp_begin(A)
    wave_ids(A)
    A(f"""
    s_and_b32 s3, s2, 3                  ; q
    s_lshr_b32 s23, s2, 3                ; j
    s_lshr_b32 s{S_TT}, s3, 1
    s_lshl_b32 s{S_TT}, s{S_TT}, 3
    s_lshr_b32 s{S_CT}, s23, 2
    s_add_u32 s{S_TT}, s{S_TT}, s{S_CT}  ; TT = 8*(q>>1) + (j>>2)
    s_and_b32 s{S_CT}, s3, 1
    s_lshl_b32 s{S_CT}, s{S_CT}, 2
    s_and_b32 s23, s23, 3
    s_add_u32 s{S_CT}, s{S_CT}, s23      ; CT = 4*(q&1) + (j&3)
    s_lshl_b32 s{S_TILE}, s{S_TT}, 3
    s_add_u32 s{S_TILE}, s{S_TILE}, s{S_CT}
    s_waitcnt lgkmcnt(0)
    """)
    srd(A, 40, 4, WS_G, G_BYTES)
    srd(A, 44, 4, WS_FLAG, FLAG_BYTES)
    A(f"""
    s_bitcmp1_b32 s2, 2
    s_cbranch_scc1 {name}_y
    """)
    srd(A, S_WSRD, 6, 0, 4096*1024*2)
    srd(A, S_ASRD, 4, WS_O, O_BYTES)
    srd(A, 48, 32, 0, 2048*1024*2)
    srd(A, 52, 34, 0, 2048*1024*2)
    A(f"""
    s_lshl_b32 s{S_N0}, s{S_CT}, 8
    s_lshl_b32 s{S_T0}, s{S_TT}, 3
    """)
    VXA = 223
    A(f"""
    v_and_b32 v{V_EP}, 15, v{V_LANE}
    v_lshlrev_b32 v{V_EP}, 11, v{V_EP}         ; (l&15)*2048
    v_lshrrev_b32 v{V_EP+1}, 4, v{V_LANE}      ; g
    v_and_b32 v{V_EP+2}, 1, v{V_EP+1}
    v_lshl_add_u32 v{V_EP}, v{V_EP+2}, 5, v{V_EP}   ; + 16*(g&1)*2
    v_lshrrev_b32 v{V_EP+2}, 1, v{V_EP+1}
    v_lshl_add_u32 v{V_EP}, v{V_EP+2}, 4, v{V_EP}   ; + 8*(g>>1)*2
    s_lshl_b32 s56, s{S_TT}, 1
    s_add_u32 s56, s56, s{S_AH}
    s_lshl_b32 s56, s56, 17
    s_lshl_b32 s57, s{S_CT}, 1
    s_add_u32 s57, s57, s{S_KG}
    s_lshl_b32 s57, s57, 7                      ; (128CT+64kg)*2
    s_add_u32 s56, s56, s57
    v_add_u32 v{VXA}, s56, v{V_EP}
    """)
    for a in range(4):
        A(f"s_mov_b32 s{58+a}, {a*16*2048}")
    for j in range(2):
        for a in range(4):
            r = V_X + (j*4 + a)*4
            A(f"buffer_load_dwordx4 v[{r}:{r+3}], v{VXA}, s[48:51], s{58+a} offen offset:{j*64}")
    gemm16_setup(A, 2048, S_N0, S_T0, 131072, NSL)
    gemm16_main(A, name + "_s", 2048, 131072, 32, NSL, True)
    A(f"""
    s_lshl_b32 s62, s{S_TILE}, 7
    v_mov_b32 v{V_EP+2}, s62
    """)
    gemm16_reduce(A)
    A(f"""
    s_mov_b32 s63, 0
{name}_poll:
    buffer_load_dword v{V_EP+3}, v{V_EP+2}, s[44:47], 0 offen sc1
    s_add_u32 s63, s63, 1
    s_waitcnt vmcnt(0)
    v_readfirstlane_b32 s64, v{V_EP+3}
    s_cmp_gt_u32 s63, 0x40000
    s_cbranch_scc1 {name}_polldone
    s_cmp_eq_u32 s64, 1
    s_cbranch_scc1 {name}_polldone
    s_sleep 2
    s_branch {name}_poll
{name}_polldone:
    s_lshl_b32 s62, s{S_TILE}, 15
    s_lshl_b32 s63, s{S_KG}, 14
    s_add_u32 s62, s62, s63
    s_lshl_b32 s63, s{S_AH}, 12
    s_add_u32 s62, s62, s63
    s_add_u32 s63, s62, 8192
    """)
    VG = V_EP + 8
    for j in range(2):
        for a in range(4):
            r = VG + (j*4 + a)*4
            A(f"buffer_load_dwordx4 v[{r}:{r+3}], v{V_TMP}, s[40:43], s{62+j} offen offset:{a*1024} sc1")
    for j in range(2):
        for a in range(4):
            r = V_X + (j*4 + a)*4
            A(f"v_permlane16_swap_b32 v{r}, v{r+2}")
            A(f"v_permlane16_swap_b32 v{r+1}, v{r+3}")
    T = V_W0
    for j in range(2):
        for a in range(4):
            n = j*4 + a
            A("s_waitcnt vmcnt(7)")
            g = VG + n*4
            xr = V_X + n*4
            o = T + 16 + (n % 2)*4
            for half in range(2):
                acc = V_ACC + ((2*j + half)*4 + a)*4
                for p in range(2):
                    gd = g + half*2 + p
                    xd = xr + half*2 + p
                    A(f"""
                    v_lshlrev_b32 v{T}, 16, v{gd}
                    v_and_b32 v{T+1}, 0xffff0000, v{gd}
                    v_lshlrev_b32 v{T+2}, 16, v{xd}
                    v_and_b32 v{T+3}, 0xffff0000, v{xd}
                    v_fmac_f32 v{T+2}, v{acc+2*p}, v{T}
                    v_fmac_f32 v{T+3}, v{acc+2*p+1}, v{T+1}
                    v_cvt_pk_bf16_f32 v{o+half*2+p}, v{T+2}, v{T+3}
                    """)
            A(f"""
            s_nop 1
            v_permlane16_swap_b32 v{o}, v{o+2}
            v_permlane16_swap_b32 v{o+1}, v{o+3}
            s_nop 0
            buffer_store_dwordx4 v[{o}:{o+3}], v{VXA}, s[52:55], s{58+a} offen offset:{j*64}
            """)
    stamp_end(A, 4, 2)
    A(f"s_endpgm")
    A.label(f"{name}_y")
    srd(A, S_WSRD, 30, 0, 3584*2048*2)
    srd(A, S_ASRD, 4, WS_U, U_BYTES)
    srd(A, 48, 36, 0, 2048*2)
    A(f"""
    s_lshl_b32 s{S_N0}, s{S_TT}, 8
    s_lshl_b32 s{S_T0}, s{S_CT}, 3
    v_and_b32 v{V_EP}, 15, v{V_LANE}
    v_lshlrev_b32 v{V_EP}, 1, v{V_EP}
    s_lshl_b32 s56, s{S_KG}, 7
    s_add_u32 s56, s56, s{S_N0}
    """)
    for x in range(4):
        A(f"buffer_load_ushort v{V_X+x}, v{V_EP}, s[48:51], s56 offen offset:{x*32}")
    gemm16_setup(A, 4096, S_N0, S_T0, 65536, NSL)
    gemm16_main(A, name + "_y", 4096, 65536, 28, NSL, False)
    gemm16_reduce(A)
    A(f"""
    s_mov_b32 s57, {LOG2E:#x}
    s_lshl_b32 s62, s{S_TILE}, 15
    s_lshl_b32 s63, s{S_AH}, 14
    s_add_u32 s62, s62, s63
    s_lshl_b32 s63, s{S_KG}, 12
    s_add_u32 s62, s62, s63
    s_add_u32 s63, s62, 8192
    """)
    for x in range(4):
        A(f"v_lshlrev_b32 v{V_X+x}, 16, v{V_X+x}")
    T = V_EP
    cnt = 0
    for j in range(2):
        for x in range(4):
            o = V_W0 + (cnt % 4)*4; cnt += 1
            regs = []
            for half in range(2):
                acc = V_ACC + (x*4 + 2*j + half)*4
                regs += [acc + r for r in range(4)]
            for i, r in enumerate(regs):
                A(f"v_add_f32 v{r}, v{r}, v{V_X+x}")
            for i, r in enumerate(regs):
                A(f"v_mul_f32 v{T+i}, s57, v{r}")
            for i, r in enumerate(regs):
                A(f"v_exp_f32 v{T+i}, -v{T+i}")
            for i, r in enumerate(regs):
                A(f"v_add_f32 v{T+i}, 1.0, v{T+i}")
            for i, r in enumerate(regs):
                A(f"v_rcp_f32 v{T+i}, v{T+i}")
            for i, r in enumerate(regs):
                A(f"v_mul_f32 v{T+i}, v{T+i}, v{r}")
            for i in range(4):
                A(f"v_cvt_pk_bf16_f32 v{o+i}, v{T+2*i}, v{T+2*i+1}")
            A(f"buffer_store_dwordx4 v[{o}:{o+3}], v{V_TMP}, s[40:43], s{62+j} offen offset:{x*1024} sc1")
    A(f"""
    s_waitcnt vmcnt(0)
    s_barrier
    s_cmp_lg_u32 s{S_WAVE}, 0
    s_cbranch_scc1 {name}_yend
    s_lshl_b32 s62, s{S_TILE}, 7
    v_mov_b32 v{T}, s62
    v_mov_b32 v{T+1}, 1
    v_cmp_eq_u32 vcc, 0, v{V_LANE}
    s_and_saveexec_b64 s[64:65], vcc
    buffer_store_dword v{T+1}, v{T}, s[44:47], 0 offen sc1
    s_mov_b64 exec, s[64:65]
{name}_yend:
    """)
    stamp_end(A, 4, 2)
    A(f"""
{name}_end:
    s_endpgm
    """)
    return kernel_desc(name, 256 + 64 + NSL*32, 256, 100)
```

```python
KA_X, KA_K, KA_V, KA_WQ, KA_WO, KA_BX, KA_W1, KA_B1, KA_W2, KA_B2, KA_OUT, KA_DBG, KA_WS = [8*i for i in range(13)]
MB = 1 << 20
WS_XN = 0;        XN_BYTES = 4*MB
WS_HT = 4*MB;     HT_BYTES = 4*MB
WS_U  = 8*MB;     U_BYTES = 3584*1024*2
WS_O  = 16*MB;    O_BYTES = 16*MB
WS_G  = 32*MB;    G_BYTES = 4*MB
WS_FLAG = 40*MB;  FLAG_BYTES = 256*128
WS_STAMP = 48*MB
HEADER = """; Kernarg layout for this problem (104 bytes, ptrs only, base s[0:1]):
"""
```

```python
import sys
from asmlib import *
from layout import *
import gen_k0, gen_k2
def build(kernels, path, NSL=4):
    A = Asm()
    launches = []
    descs = []
    if "k0" in kernels:
        descs.append(gen_k0.gen_k0(A)); launches.append(f"; @launch kernel=ln_kernel grid=(256,1,1) block=(512,1,1) lds={gen_k0.LN_LDS}")
    if "k1" in kernels:
        import gen_k1
        descs.append(gen_k1.gen_k1(A)); launches.append(f"; @launch kernel=att_kernel grid=(256,1,1) block=(256,1,1) lds={gen_k1.K1_LDS}")
    if "k2" in kernels:
        descs.append(gen_k2.gen_k2(A, NSL=NSL)); launches.append(f"; @launch kernel=sy_kernel grid=(256,1,1) block=(256,1,1) lds={NSL*32768}")
    txt = HEADER + "\n".join(launches) + "\n" + '.amdgcn_target "amdgcn-amd-amdhsa--gfx950"\n' + A.text() + "".join(descs)
    open(path, "w").write(txt)
if __name__ == "__main__":
    build(sys.argv[2].split(","), sys.argv[1], NSL=int(sys.argv[3]) if len(sys.argv) > 3 else 4)
```

```python
from asmlib import *
from layout import *

def wave_allreduce_add(A, s, t):
    A(f"""
    s_nop 1
    v_add_f32_dpp v{t}, v{s}, v{s} quad_perm:[1,0,3,2] row_mask:0xf bank_mask:0xf
    s_nop 1
    v_add_f32_dpp v{s}, v{t}, v{t} quad_perm:[2,3,0,1] row_mask:0xf bank_mask:0xf
    s_nop 1
    v_add_f32_dpp v{t}, v{s}, v{s} row_half_mirror row_mask:0xf bank_mask:0xf
    s_nop 1
    v_add_f32_dpp v{s}, v{t}, v{t} row_mirror row_mask:0xf bank_mask:0xf
    s_nop 0
    v_mov_b32 v{t}, v{s}
    s_nop 1
    v_permlane16_swap_b32 v{s}, v{t}
    s_nop 0
    v_add_f32 v{s}, v{s}, v{t}
    s_nop 0
    v_mov_b32 v{t}, v{s}
    s_nop 1
    v_permlane32_swap_b32 v{s}, v{t}
    s_nop 0
    v_add_f32 v{s}, v{s}, v{t}
    """)

def rnd_bf16(A, d, s):
    A(f"v_cvt_pk_bf16_f32 v{d}, v{s}, v{s}")
    A(f"v_lshlrev_b32 v{d}, 16, v{d}")

def layernorm16(A, X, P, T):
    s, t, m, q = T, T+1, T+2, T+3
    D = T + 4
    A(f"v_add_f32 v{s}, v{X}, v{X+1}")
    A(f"v_add_f32 v{t}, v{X+2}, v{X+3}")
    for i in range(4, 16, 2):
        A(f"v_add_f32 v{s}, v{s}, v{X+i}")
        A(f"v_add_f32 v{t}, v{t}, v{X+i+1}")
    A(f"v_add_f32 v{s}, v{s}, v{t}")
    wave_allreduce_add(A, s, t)
    A(f"v_mul_f32 v{m}, 0x3a800000, v{s}")
    for i in range(16):
        A(f"v_sub_f32 v{D+i}, v{X+i}, v{m}")
    A(f"v_mul_f32 v{s}, v{D}, v{D}")
    A(f"v_mul_f32 v{t}, v{D+1}, v{D+1}")
    for i in range(2, 16, 2):
        A(f"v_fmac_f32 v{s}, v{D+i}, v{D+i}")
        A(f"v_fmac_f32 v{t}, v{D+i+1}, v{D+i+1}")
    A(f"v_add_f32 v{s}, v{s}, v{t}")
    rnd_bf16(A, m, m)
    wave_allreduce_add(A, s, t)
    A(f"v_mul_f32 v{q}, 0x3a800000, v{s}")
    rnd_bf16(A, q, q)
    A(f"v_add_f32 v{q}, 0x3727c5ac, v{q}")
    rnd_bf16(A, q, q)
    A(f"v_sqrt_f32 v{q}, v{q}")
    A("s_nop 0")
    rnd_bf16(A, q, q)
    A(f"v_rcp_f32 v{q}, v{q}")
    for i in range(16):
        A(f"v_sub_f32 v{D+i}, v{X+i}, v{m}")
    for i in range(8):
        A(f"v_cvt_pk_bf16_f32 v{P+i}, v{D+2*i}, v{D+2*i+1}")
    for i in range(8):
        A(f"v_lshlrev_b32 v{D+2*i}, 16, v{P+i}")
        A(f"v_and_b32 v{D+2*i+1}, 0xffff0000, v{P+i}")
    for i in range(16):
        A(f"v_mul_f32 v{D+i}, v{D+i}, v{q}")
    for i in range(8):
        A(f"v_cvt_pk_bf16_f32 v{P+i}, v{D+2*i}, v{D+2*i+1}")
    for i in range(8):
        A(f"v_lshlrev_b32 v{X+2*i}, 16, v{P+i}")
        A(f"v_and_b32 v{X+2*i+1}, 0xffff0000, v{P+i}")

LN_PITCH = 2112
LN_LDS = 2 * 8 * LN_PITCH

def gen_k0(A, name="ln_kernel"):
    kernel_begin(A, name)
    A(f"""
    s_cmp_ge_u32 s2, 256
    s_cbranch_scc1 {name}_end
    s_load_dwordx2 s[4:5], s[0:1], {KA_X}
    s_load_dwordx2 s[6:7], s[0:1], {KA_WS}
    s_load_dwordx2 s[32:33], s[0:1], {KA_WQ}
    s_load_dwordx2 s[34:35], s[0:1], {KA_K}
    s_load_dwordx2 s[36:37], s[0:1], {KA_V}
    v_and_b32 v1, 63, v0                 ; lane
    v_lshrrev_b32 v2, 6, v0
    s_lshr_b32 s20, s2, 2                ; ks
    v_readfirstlane_b32 s21, v2          ; i
    s_and_b32 s22, s2, 3                 ; g
    v_lshlrev_b32 v3, 4, v1              ; lane*16
    s_and_b32 s23, s21, 3
    s_lshr_b32 s24, s21, 2
    s_lshl_b32 s24, s24, 4
    s_add_u32 s23, s23, s24              ; (i&3) + 16*(i>>2)
    s_lshl_b32 s24, s22, 2
    s_add_u32 s23, s23, s24              ; + 4g
    s_lshl_b32 s24, s20, 5
    s_add_u32 s23, s23, s24              ; token
    s_lshl_b32 s23, s23, 11              ; token*2048
    s_waitcnt lgkmcnt(0)
    """)
    srd(A, 8, 4, 0, 2048*1024*2)
    A(f"""
    buffer_load_dwordx4 v[4:7], v3, s[8:11], s23 offen
    buffer_load_dwordx4 v[8:11], v3, s[8:11], s23 offen offset:1024
    """)
    srd(A, 40, 32, 0, 8 << 20)
    srd(A, 44, 34, 0, 2 << 20)
    srd(A, 48, 36, 0, 2 << 20)
    A(f"""
    s_cmp_ge_u32 s21, 4
    s_cbranch_scc1 {name}_t2
    s_lshl_b32 s25, s2, 15
    v_lshlrev_b32 v12, 7, v0
    buffer_load_dword v70, v12, s[40:43], s25 offen
    s_branch {name}_t3
{name}_t2:
    s_cmp_lg_u32 s21, 4
    s_cbranch_scc1 {name}_t3
    s_lshr_b32 s25, s2, 6
    s_lshl_b32 s25, s25, 19
    s_and_b32 s26, s2, 63
    s_lshl_b32 s26, s26, 11
    s_add_u32 s25, s25, s26
    s_add_u32 s25, s25, 393216
    v_and_b32 v12, 15, v1
    v_lshlrev_b32 v12, 7, v12
    buffer_load_dword v70, v12, s[44:47], s25 offen
    buffer_load_dword v71, v12, s[48:51], s25 offen
{name}_t3:
    """)
    srd(A, 12, 6, WS_XN, XN_BYTES)
    srd(A, 16, 6, WS_HT, HT_BYTES)
    srd(A, 28, 6, WS_FLAG, FLAG_BYTES)
    A(f"""
    s_lshl_b32 s25, s2, 7
    v_mov_b32 v12, 0
    v_mov_b32 v13, s25
    v_cmp_eq_u32 vcc, 0, v0
    s_mul_i32 s25, s21, {LN_PITCH}
    v_add_u32 v14, s25, v3
    s_cmp_lt_u32 s21, 4
    s_cbranch_scc1 {name}_w1
    s_cmp_eq_u32 s21, 4
    s_cbranch_scc1 {name}_w2
    s_waitcnt vmcnt(0)
{name}_w1:
    s_waitcnt vmcnt(1)
{name}_w2:
    s_waitcnt vmcnt(2)
    s_and_saveexec_b64 s[26:27], vcc
    s_cbranch_execz {name}_noflag
    buffer_store_dword v12, v13, s[28:31], 0 offen
{name}_noflag:
    s_mov_b64 exec, s[26:27]
    """)
    X = 16
    for i in range(8):
        A(f"v_lshlrev_b32 v{X+2*i}, 16, v{4+i}")
        A(f"v_and_b32 v{X+2*i+1}, 0xffff0000, v{4+i}")
    P = 32; T = 48
    layernorm16(A, X, P, T)
    A(f"ds_write_b128 v14, v[{P}:{P+3}]")
    A(f"ds_write_b128 v14, v[{P+4}:{P+7}] offset:1024")
    P2 = 40
    layernorm16(A, X, P2, T)
    A(f"ds_write_b128 v14, v[{P2}:{P2+3}] offset:{8*LN_PITCH}")
    A(f"ds_write_b128 v14, v[{P2+4}:{P2+7}] offset:{8*LN_PITCH+1024}")
    A(f"""
    v_and_b32 v16, 7, v1                 ; i
    v_lshrrev_b32 v17, 3, v1             ; l>>3 (0..7)
    s_lshl_b32 s25, s21, 4
    v_add_u32 v17, s25, v17              ; c (for e=0)
    v_mul_u32_u24 v18, {LN_PITCH}, v16
    v_lshl_add_u32 v18, v17, 4, v18
    v_lshrrev_b32 v19, 1, v17
    v_lshlrev_b32 v19, 16, v19
    v_and_b32 v20, 1, v17
    v_lshlrev_b32 v20, 9, v20
    v_add_u32 v19, v19, v20
    v_lshl_add_u32 v19, v16, 4, v19
    s_lshl_b32 s25, s20, 10
    s_lshl_b32 s26, s22, 7
    s_add_u32 s25, s25, s26              ; ks*1024 + g*128
    v_and_b32 v21, 15, v1
    v_lshrrev_b32 v22, 2, v21            ; r
    v_and_b32 v23, 3, v21                ; c'
    v_lshrrev_b32 v24, 4, v1             ; l>>4
    s_lshl_b32 s26, s21, 3               ; 8w
    v_add_u32 v24, s26, v24              ; dt (e=0)
    v_mul_u32_u24 v25, {LN_PITCH}, v22
    v_lshl_add_u32 v25, v24, 5, v25
    v_lshl_add_u32 v25, v23, 3, v25
    v_lshlrev_b32 v26, 10, v24
    v_lshl_add_u32 v26, v21, 4, v26
    s_lshl_b32 s26, s20, 16
    s_lshl_b32 s27, s22, 8
    s_add_u32 s26, s26, s27
    s_waitcnt lgkmcnt(0)
    s_barrier
    ds_read_b128 v[32:35], v18
    ds_read_b128 v[36:39], v18 offset:128
    ds_read_b64_tr_b16 v[40:41], v25 offset:{8*LN_PITCH}
    ds_read_b64_tr_b16 v[42:43], v25 offset:{8*LN_PITCH + 4*LN_PITCH}
    ds_read_b64_tr_b16 v[44:45], v25 offset:{8*LN_PITCH + 128}
    ds_read_b64_tr_b16 v[46:47], v25 offset:{8*LN_PITCH + 4*LN_PITCH + 128}
    s_add_u32 s27, s25, {4*65536}
    s_add_u32 s24, s26, 4096
    s_waitcnt lgkmcnt(5)
    buffer_store_dwordx4 v[32:35], v19, s[12:15], s25 offen
    s_waitcnt lgkmcnt(4)
    buffer_store_dwordx4 v[36:39], v19, s[12:15], s27 offen
    s_waitcnt lgkmcnt(2)
    buffer_store_dwordx4 v[40:43], v26, s[16:19], s26 offen
    s_waitcnt lgkmcnt(0)
    buffer_store_dwordx4 v[44:47], v26, s[16:19], s24 offen
{name}_end:
    s_endpgm
    """)
    return kernel_desc(name, 72, 72, 56)
```

```python
from asmlib import *
from layout import *
from gen_gemm import *
from gen_k2 import wave_ids, LOG2E
import struct

K1_LDS = 160*1024
def f2u(x): return struct.unpack("<I", struct.pack("<f", x))[0]
import math
QSCALE = f2u(math.log2(math.e) / math.sqrt(128.0))

class VM:
    def __init__(self): self.ops = []
    def issue(self, tag): self.ops.append(tag)
    def wait(self, *tags):
        last = max((i for i, t in enumerate(self.ops) if t in tags), default=-1)
        n = len(self.ops) - 1 - last
        assert n <= 63, n
        return f"s_waitcnt vmcnt({n})"

def u_epilogue(A, S_FT, S_DT, VB):
    A(f"""
    s_lshl_b32 s62, s{S_FT}, 2
    s_lshl_b32 s63, s{S_KG}, 1
    s_add_u32 s62, s62, s63
    s_lshl_b32 s62, s62, 16
    s_lshl_b32 s63, s{S_DT}, 13
    s_add_u32 s62, s62, s63
    s_lshl_b32 s63, s{S_AH}, 12
    s_add_u32 s62, s62, s63
    s_add_u32 s63, s62, 65536
    """)
    c1 = 2.0*math.sqrt(2.0/math.pi)*math.log2(math.e)
    c2 = c1*0.044715
    A(f"s_mov_b32 s57, {f2u(c2):#x}")
    A(f"v_mov_b32 v{V_EP+40}, {f2u(c1):#x}")
    BF = V_EP + 16
    for x in range(4):
        for p in range(2):
            A(f"v_lshlrev_b32 v{BF+4*x+2*p}, 16, v{VB+2*x+p}")
            A(f"v_and_b32 v{BF+4*x+2*p+1}, 0xffff0000, v{VB+2*x+p}")
    T = V_EP
    cnt = 0
    for j in range(2):
        for a in range(4):
            o = V_W0 + (cnt % 4)*4; cnt += 1
            regs = []; bias = []
            for half in range(2):
                x = 2*j + half
                acc = V_ACC + (x*4 + a)*4
                regs += [acc + r for r in range(4)]
                bias += [BF + 4*x + r for r in range(4)]
            for i, r in enumerate(regs): A(f"v_add_f32 v{r}, v{r}, v{bias[i]}")
            for i, r in enumerate(regs): A(f"v_mul_f32 v{T+i}, v{r}, v{r}")
            for i, r in enumerate(regs): A(f"v_fma_f32 v{T+i}, v{T+i}, s57, v{V_EP+40}")
            for i, r in enumerate(regs): A(f"v_mul_f32 v{T+i}, v{T+i}, v{r}")
            for i, r in enumerate(regs): A(f"v_exp_f32 v{T+i}, -v{T+i}")
            for i, r in enumerate(regs): A(f"v_add_f32 v{T+i}, 1.0, v{T+i}")
            for i, r in enumerate(regs): A(f"v_rcp_f32 v{T+i}, v{T+i}")
            for i, r in enumerate(regs): A(f"v_mul_f32 v{T+i}, v{T+i}, v{r}")
            for i in range(4): A(f"v_cvt_pk_bf16_f32 v{o+i}, v{T+2*i}, v{T+2*i+1}")
            A(f"buffer_store_dwordx4 v[{o}:{o+3}], v{V_TMP}, s[40:43], s{62+j} offen offset:{a*1024}")

Q_DMA = 2
Q_ACT = 6
Q_TR = 8
Q_W = [32, 48]
Q_ACC = 96
Q_RING = 96*1024
NSQ = 4
VQ = 32
VS = [96, 128]
VMB = 160
VP = [192, 208]
VL = 224
VNM = 228
VT = 230
KA_ = 8
VA_ = 16
VKD = 20
VVD = 24
VOS = 25
A_O = 0; A_KF = 128; A_VF = 160
S_KSRD = 44; S_VSRD = 48; S_OSRD = 52

def gen_k1(A, name="att_kernel", NSL=4):
    kernel_begin(A, name)
    S_FT, S_DT, S_RB, S_HEAD, S_N0, S_T0, S_GRP = 24, 25, 26, 27, 28, 29, 23
    A(f"""
    s_cmp_ge_u32 s2, 256
    s_cbranch_scc1 {name}_end
    s_load_dwordx2 s[4:5], s[0:1], {KA_WS}
    s_load_dwordx2 s[6:7], s[0:1], {KA_W1}
    s_load_dwordx2 s[30:31], s[0:1], {KA_B1}
    s_load_dwordx2 s[32:33], s[0:1], {KA_WQ}
    s_load_dwordx2 s[34:35], s[0:1], {KA_K}
    s_load_dwordx2 s[36:37], s[0:1], {KA_V}
    s_load_dwordx2 s[72:73], s[0:1], {KA_WO}
    s_load_dwordx2 s[74:75], s[0:1], {KA_W2}
    """)
    stamp_begin(A)
    wave_ids(A)
    A(f"""
    s_and_b32 s3, s2, 7                  ; xcd
    s_lshr_b32 s38, s2, 3                ; j
    s_lshr_b32 s{S_GRP}, s3, 1           ; group
    s_and_b32 s39, s3, 1                 ; half
    s_lshl_b32 s39, s39, 2
    s_lshr_b32 s{S_RB}, s38, 3
    s_add_u32 s{S_RB}, s{S_RB}, s39
    s_and_b32 s{S_HEAD}, s38, 7
    s_lshl_b32 s56, s{S_GRP}, 3
    s_add_u32 s{S_HEAD}, s{S_HEAD}, s56  ; head
    s_mul_i32 s{S_FT}, s{S_GRP}, 7
    s_lshr_b32 s56, s38, 2
    s_add_u32 s{S_FT}, s{S_FT}, s56
    s_and_b32 s{S_DT}, s38, 3
    s_add_u32 s{S_DT}, s{S_DT}, s39
    s_waitcnt lgkmcnt(0)
    """)
    A.label(f"{name}_q")
    P = 8192
    srd(A, S_WSRD, 32, 0, 1024*4096*2)
    srd(A, S_ASRD, 4, WS_XN, XN_BYTES)
    A(f"""
    s_lshl_b32 s56, s{S_GRP}, 19
    s_add_u32 s56, s56, {1536*256}
    s_add_u32 s{S_KSRD}, s34, s56
    s_addc_u32 s{S_KSRD+1}, s35, 0
    s_mov_b32 s{S_KSRD+2}, 0x20000
    s_mov_b32 s{S_KSRD+3}, 0x00020000
    s_add_u32 s{S_VSRD}, s36, s56
    s_addc_u32 s{S_VSRD+1}, s37, 0
    s_mov_b32 s{S_VSRD+2}, 0x20000
    s_mov_b32 s{S_VSRD+3}, 0x00020000
    """)
    srd(A, S_OSRD, 4, WS_O, O_BYTES)
    t0, t1, t2, t3, t4 = VT, VT+1, VT+2, VT+3, VT+4
    A(f"""
    v_lshrrev_b32 v{t0}, 4, v{V_LANE}          ; G = i>>4
    v_and_b32 v{t1}, 15, v{V_LANE}             ; p / j
    v_lshlrev_b32 v{t2}, 2, v{t0}
    v_xor_b32 v{t2}, v{t2}, v{t1}
    v_lshlrev_b32 v{t2}, 4, v{t2}
    v_lshl_add_u32 v{VVD}, v{t0}, 8, v{t2}
    v_lshl_add_u32 v{t2}, v{t0}, 13, v{t2}     ; + G*P
    s_lshl_b32 s56, s{S_HEAD}, 8
    v_add_u32 v{Q_DMA}, s56, v{t2}
    v_add_u32 v{Q_DMA+1}, {4*P-1024}, v{Q_DMA}
    v_add_u32 v{Q_DMA+2}, {2*(4*P-1024)}, v{Q_DMA}
    v_add_u32 v{Q_DMA+3}, {3*(4*P-1024)}, v{Q_DMA}
    s_lshl_b32 s56, s{S_RB}, 2
    s_add_u32 s56, s56, s{S_WAVE}
    s_lshl_b32 s56, s56, 11
    v_lshlrev_b32 v{Q_ACT}, 4, v{V_LANE}
    v_add_u32 v{Q_ACT}, s56, v{Q_ACT}
    s_mul_i32 s{S_WOFF}, s{S_WAVE}, {16*P}
    s_sub_u32 s{S_WOFF}, s{S_WOFF}, {64*P}
    s_lshl_b32 s{S_M0B}, s{S_WAVE}, 12
    s_mov_b32 s{S_AOFF}, 0
    """)
    vm = VM()
    def q_dma(st):
        f = [[f"s_add_u32 m0, s{S_M0B}, {Q_RING + (st % NSQ)*16384}"]]
        f.append([f"s_add_u32 s{S_WOFF}, s{S_WOFF}, {64*P}"])
        for q in range(4):
            f.append([("W", st), f"buffer_load_dwordx4 v{Q_DMA+q}, s[{S_WSRD}:{S_WSRD+3}], s{S_WOFF} offen offset:{q*1024} lds"])
        return f
    def q_act(st, ks):
        f = []
        for qt in range(2):
            r = (st % NSQ)*32 + ks*8 + qt*4
            f.append([("X", st), f"buffer_load_dwordx4 a[{r}:{r+3}], v{Q_ACT}, s[{S_ASRD}:{S_ASRD+3}], s{S_AOFF} offen offset:{qt*1024}"])
        f.append([f"s_add_u32 s{S_AOFF}, s{S_AOFF}, 65536"])
        return f
    def kv_dma(kind, blk):
        base = (0 if kind == "K" else 65536) + (blk % 4)*16384
        srdr = S_KSRD if kind == "K" else S_VSRD
        f = [[f"s_add_u32 m0, s{S_M0B}, {base}"], [f"s_add_u32 s58, s{S_M0B}, {blk*16384}"]]
        for q in range(4):
            v = VKD + q if kind == "K" else VVD
            f.append([(kind, blk), f"buffer_load_dwordx4 v{v}, s[{srdr}:{srdr+3}], s58 offen offset:{q*1024} lds"])
        return f
    def emit(groups):
        for g in groups:
            for x in g:
                if isinstance(x, tuple): vm.issue(x)
                else: A(x)
    for st in range(NSQ - 1):
        emit(q_dma(st))
        for ks in range(4): emit(q_act(st, ks))
    A(f"""
    v_lshrrev_b32 v{t2}, 2, v{t1}              ; r
    v_and_b32 v{t3}, 3, v{t1}                  ; c
    v_lshrrev_b32 v{t4}, 1, v{t0}              ; h
    v_lshl_add_u32 v{VT+5}, v{t4}, 3, v{t2}    ; 8h + r
    v_lshlrev_b32 v{VT+5}, 8, v{VT+5}
    v_and_b32 v{VT+6}, 1, v{t0}
    v_lshl_add_u32 v{VT+5}, v{VT+6}, 5, v{VT+5}   ; + 2(G&1)*16
    v_and_b32 v{VT+7}, 1, v{t3}
    v_lshl_add_u32 v{VT+8}, v{VT+7}, 4, v{VT+5}   ; + (c&1)*16
    v_lshrrev_b32 v{VT+7}, 1, v{t3}
    v_lshl_add_u32 v{VT+8}, v{VT+7}, 3, v{VT+8}   ; + (c>>1)*8
    v_add_u32 v{VT+8}, {Q_RING}, v{VT+8}
    v_lshl_add_u32 v{VT+9}, v{t4}, 2, v{t2}
    v_lshlrev_b32 v{VT+9}, 8, v{VT+9}
    v_lshl_add_u32 v{VT+9}, v{VT+6}, 5, v{VT+9}
    v_lshl_add_u32 v{VT+9}, v{t3}, 3, v{VT+9}     ; + c*8
    v_add_u32 v{VT+9}, 65536, v{VT+9}
    """)
    for dt in range(4):
        A(f"v_xor_b32 v{VT+10}, {dt}, v{t2}")
        A(f"v_lshl_add_u32 v{Q_TR+dt+18}, v{VT+10}, 6, v{VT+8}")
        A(f"v_lshl_add_u32 v{VA_+dt}, v{VT+10}, 6, v{VT+9}")
    QT = Q_TR + 18
    for q in range(4):
        A(f"""
        v_add_u32 v{VT+10}, {4*q}, v{t0}
        v_xor_b32 v{VT+10}, v{VT+10}, v{t1}
        v_lshlrev_b32 v{VT+10}, 4, v{VT+10}
        v_lshl_add_u32 v{VKD+q}, v{t0}, 8, v{VT+10}
        """)
    A(f"""
    v_and_b32 v{VT+10}, 31, v{V_LANE}
    v_lshlrev_b32 v{VT+11}, 8, v{VT+10}
    v_xor_b32 v{VT+12}, v{t4}, v{t1}           ; h ^ (key&15)
    """)
    for ks in range(8):
        A(f"v_xor_b32 v{VT+13}, {2*ks}, v{VT+12}")
        A(f"v_lshl_add_u32 v{KA_+ks}, v{VT+13}, 4, v{VT+11}")
    A(f"""
    v_bfe_u32 v{VT+11}, v{VT+10}, 2, 1
    v_lshlrev_b32 v{VT+11}, 10, v{VT+11}
    v_lshl_add_u32 v{VT+11}, v{t4}, 8, v{VT+11}
    v_lshrrev_b32 v{VT+12}, 3, v{VT+10}
    v_lshl_add_u32 v{VT+11}, v{VT+12}, 6, v{VT+11}
    v_and_b32 v{VT+12}, 3, v{VT+10}
    v_lshl_add_u32 v{VT+11}, v{VT+12}, 4, v{VT+11}
    s_lshl_b32 s56, s{S_RB}, 2
    s_add_u32 s56, s56, s{S_WAVE}
    s_lshl_b32 s56, s56, 12
    v_add_u32 v{VOS}, s56, v{VT+11}
    """)
    for i in range(128):
        A(f"v_mov_b32 v{Q_ACC+i}, 0")
    def q_tr(st, ks, wset):
        f = []
        base = (st % NSQ)*16384 + ks*4096
        for dt in range(4):
            r = wset + 4*dt
            f.append([f"ds_read_b64_tr_b16 v[{r}:{r+1}], v{QT+dt} offset:{base}"])
            f.append([f"ds_read_b64_tr_b16 v[{r+2}:{r+3}], v{QT+dt} offset:{base+1024}"])
        return f
    def q_mfma(st, ks, wset):
        out = []
        for dt in range(4):
            for qt in range(2):
                r = (st % NSQ)*32 + ks*8 + qt*4
                c = Q_ACC + (dt*2 + qt)*16
                out.append(f"v_mfma_f32_32x32x16_bf16 v[{c}:{c+15}], v[{wset+4*dt}:{wset+4*dt+3}], a[{r}:{r+3}], v[{c}:{c+15}]")
        return out
    A(vm.wait(("W", 0), ("X", 0)))
    A("s_barrier")
    emit(q_tr(0, 0, Q_W[0]))
    if 'stamp' in EXP:
        A("s_memtime s[80:81]"); A("s_memrealtime s[82:83]")
    A("s_waitcnt lgkmcnt(0)")
    NST = 16
    kvq = [("K", 0), ("K", 1), ("V", 0), ("K", 2), ("V", 1), ("K", 3)]
    for st in range(NST):
        for ks in range(4):
            cur = Q_W[ks & 1]; nx = Q_W[(ks+1) & 1]
            fill = []
            if ks < 3: tr = q_tr(st, ks+1, nx)
            elif st + 1 < NST: tr = q_tr(st+1, 0, nx)
            else: tr = []
            vmops = []
            tgt = st + NSQ - 1
            if tgt < NST:
                if ks == 0: vmops += q_dma(tgt)
                vmops += q_act(tgt, ks)
            elif ks in (0, 2) and kvq:
                vmops += kv_dma(*kvq.pop(0))
            fill = mix(tr, vmops)
            for grp in interleave(q_mfma(st, ks, cur), fill, per=2):
                emit([grp])
            if ks == 2 and st + 1 < NST:
                A(vm.wait(("W", st+1), ("X", st+1)).replace(")", ") lgkmcnt(0)"))
                A("s_barrier")
            else:
                A("s_waitcnt lgkmcnt(0)")
    if 'stamp' in EXP:
        A("s_memrealtime s[70:71]")
    A("s_barrier")
    emit(kv_dma("V", 2)); emit(kv_dma("V", 3))
    A(f"s_mov_b32 s57, {QSCALE:#x}")
    A("s_nop 7")
    for qt in range(2):
        for ks in range(8):
            c = Q_ACC + ((ks >> 1)*2 + qt)*16 + 8*(ks & 1)
            d = VQ + (qt*8 + ks)*4
            for i in range(8): A(f"v_mul_f32 v{c+i}, s57, v{c+i}")
            for i in range(4): A(f"v_cvt_pk_bf16_f32 v{d+i}, v{c+2*i}, v{c+2*i+1}")
    srd(A, 8, 6, 0, 2048*3584*2)
    srd(A, 12, 72, 0, 8 << 20)
    srd(A, 64, 74, 0, 2048*3584*2)
    A(f"""
    s_lshl_b32 s56, s2, 15
    v_lshlrev_b32 v30, 7, v0
    v_add_u32 v30, s56, v30
    s_mov_b32 s59, 0x800000
    """)
    touch = {1: "buffer_load_dword v31, v30, s[8:11], 0 offen", 3: "buffer_load_dword v31, v30, s[8:11], s59 offen",
             6: "buffer_load_dword v31, v30, s[12:15], 0 offen", 9: "buffer_load_dword v31, v30, s[64:67], 0 offen",
             12: "buffer_load_dword v31, v30, s[64:67], s59 offen"}
    for i in range(128): A(f"v_accvgpr_write_b32 a{A_O+i}, 0")
    for i in range(4): A(f"v_mov_b32 v{VL+i}, 0")
    def k_reads(n):
        base = ((n >> 1) % 4)*16384 + (n & 1)*8192
        return [[f"ds_read_b128 a[{A_KF+4*ks}:{A_KF+4*ks+3}], v{KA_+ks} offset:{base}"] for ks in range(8)]
    def v_reads(n):
        base = ((n >> 1) % 4)*16384 + (n & 1)*8192
        f = []
        for kk in range(2):
            for dt in range(4):
                r = A_VF + (kk*4 + dt)*4
                f.append([f"ds_read_b64_tr_b16 a[{r}:{r+1}], v{VA_+dt} offset:{base + kk*4096}"])
                f.append([f"ds_read_b64_tr_b16 a[{r+2}:{r+3}], v{VA_+dt} offset:{base + kk*4096 + 2048}"])
        return f
    def qk(n, czero=False):
        out = []
        for ks in range(8):
            for qt in range(2):
                d = VS[n & 1] + qt*16
                q = VQ + (qt*8 + ks)*4
                c = f"v[{d}:{d+15}]" if ks else ("0" if czero else f"v[{VMB+16*qt}:{VMB+16*qt+15}]")
                out.append(f"v_mfma_f32_32x32x16_bf16 v[{d}:{d+15}], a[{A_KF+4*ks}:{A_KF+4*ks+3}], v[{q}:{q+3}], {c}")
        return out
    def pv(n):
        out = []
        for kk in range(2):
            for dt in range(4):
                for qt in range(2):
                    o = A_O + (dt*2 + qt)*16
                    r = A_VF + (kk*4 + dt)*4
                    p = VP[n & 1] + qt*8 + kk*4
                    out.append(f"v_mfma_f32_32x32x16_bf16 a[{o}:{o+15}], a[{r}:{r+3}], v[{p}:{p+3}], a[{o}:{o+15}]")
        return out
    def softmax(n):
        f = []
        pend = []
        for qt in range(2):
            s = VS[n & 1] + qt*16
            p = VP[n & 1] + qt*8
            for i in range(0, 16, 2):
                g = [f"v_exp_f32 v{s+i}, v{s+i}", f"v_exp_f32 v{s+i+1}, v{s+i+1}"]
                f.append(g + pend)
                pend = [f"v_add_f32 v{VL+2*qt}, v{VL+2*qt}, v{s+i}", f"v_add_f32 v{VL+2*qt+1}, v{VL+2*qt+1}, v{s+i+1}",
                        f"v_cvt_pk_bf16_f32 v{p+i//2}, v{s+i}, v{s+i+1}"]
        f.append(["s_nop 0"] + pend)
        return f
    A(vm.wait(("K", 0), ("K", 1), ("V", 0)))
    A("s_barrier")
    emit(k_reads(0))
    A("s_waitcnt lgkmcnt(0)")
    for x in qk(0, czero=True): A(x)
    emit(k_reads(1))
    A("s_nop 7"); A("s_nop 3")
    for qt in range(2):
        s = VS[0] + qt*16
        m = VNM + qt
        A(f"v_max3_f32 v{m}, v{s}, v{s+1}, v{s+2}")
        for i in range(3, 15, 2):
            A(f"v_max3_f32 v{m}, v{m}, v{s+i}, v{s+i+1}")
        A(f"v_max_f32 v{m}, v{m}, v{s+15}")
    A(f"""
    v_mov_b32 v{VT}, v{VNM}
    v_mov_b32 v{VT+1}, v{VNM+1}
    s_nop 1
    v_permlane32_swap_b32 v{VNM}, v{VT}
    v_permlane32_swap_b32 v{VNM+1}, v{VT+1}
    s_nop 0
    v_max_f32 v{VNM}, v{VNM}, v{VT}
    v_max_f32 v{VNM+1}, v{VNM+1}, v{VT+1}
    v_sub_f32 v{VNM}, 0, v{VNM}
    v_sub_f32 v{VNM+1}, 0, v{VNM+1}
    """)
    for qt in range(2):
        for i in range(16):
            A(f"v_mov_b32 v{VMB+16*qt+i}, v{VNM+qt}")
            A(f"v_add_f32 v{VS[0]+16*qt+i}, v{VS[0]+16*qt+i}, v{VNM+qt}")
    A("s_waitcnt lgkmcnt(0)")
    NT = 16
    for n in range(NT + 1):
        if n % 2 == 0 and n >= 2:
            c = n // 2
            need = []
            if c + 1 < 8: need.append(("K", c+1))
            if c < 8: need.append(("V", c))
            if need: A(vm.wait(*need))
            A("s_barrier")
        sm = softmax(n) if n < NT else []
        h1 = sm[:len(sm)//2]; h2 = sm[len(sm)//2:]
        bb = qk(n+1) if n + 1 < NT else []
        ld = v_reads(n-1) if n >= 1 else []
        vmops = []
        if n % 2 == 0 and n >= 2:
            c = n // 2
            if c + 4 < 8: vmops += kv_dma("K", c + 4) if False else []
            if c + 4 < 8: vmops += kv_dma("K", c + 4)
            if c >= 2 and c + 2 < 8: vmops += kv_dma("V", c + 2)
        if n == 1:
            pass
        if n == 2: vmops = kv_dma("K", 4) + vmops
        if n in touch and 'notouch' not in EXP: vmops = vmops + [[("T", n), touch[n]]]
        def place(bb, groups):
            if not bb:
                emit(groups); return
            k = len(groups)
            out = [[b] for b in bb]
            for i, g in enumerate(groups):
                out[min(len(bb)-1, i*len(bb)//max(k,1))].extend(g)
            emit(out)
        def merge(a, b):
            out = []
            ia = ib = 0
            while ia < len(a) or ib < len(b):
                ra = ia / max(len(a), 1); rb = ib / max(len(b), 1)
                if ia < len(a) and (ra <= rb*0.75 or ib >= len(b)): out.append(a[ia]); ia += 1
                elif ib < len(b): out.append(b[ib]); ib += 1
                else: out.append(a[ia]); ia += 1
            return out
        place(bb, merge(ld, h1))
        A("s_waitcnt lgkmcnt(0)")
        bb = pv(n-1) if n >= 1 else []
        ld = k_reads(n+2) if n + 2 < NT else []
        place(bb, merge(ld + vmops, h2))
        A("s_waitcnt lgkmcnt(0)")
    if 'stamp' in EXP:
        A("s_memtime s[84:85]"); A("s_memrealtime s[86:87]"); A("s_waitcnt lgkmcnt(0)")
    A.label(f"{name}_fin")
    A(f"""
    v_add_f32 v{VL}, v{VL}, v{VL+1}
    v_add_f32 v{VL+2}, v{VL+2}, v{VL+3}
    s_nop 0
    v_mov_b32 v{VL+1}, v{VL}
    v_mov_b32 v{VL+3}, v{VL+2}
    s_nop 1
    v_permlane32_swap_b32 v{VL}, v{VL+1}
    v_permlane32_swap_b32 v{VL+2}, v{VL+3}
    s_nop 0
    v_add_f32 v{VL}, v{VL}, v{VL+1}
    v_add_f32 v{VL+2}, v{VL+2}, v{VL+3}
    v_rcp_f32 v{VL+1}, v{VL}
    v_rcp_f32 v{VL+3}, v{VL+2}
    s_lshl_b32 s56, s{S_HEAD}, 19
    """)
    cnt = 0
    for dt in range(4):
        if dt: A(f"s_add_u32 s56, s56, 131072")
        for qt in range(2):
            o = A_O + (dt*2 + qt)*16
            T = 96 + (cnt % 2)*32; cnt += 1
            for i in range(16): A(f"v_accvgpr_read_b32 v{T+i}, a{o+i}")
            for i in range(16): A(f"v_mul_f32 v{T+i}, v{T+i}, v{VL+1+2*qt}")
            for pc in range(2):
                d = T + 16 + pc*4
                for e, b in enumerate((4*pc, 4*pc+2, 8+4*pc, 8+4*pc+2)):
                    A(f"v_cvt_pk_bf16_f32 v{d+e}, v{T+b}, v{T+b+1}")
                A(f"buffer_store_dwordx4 v[{d}:{d+3}], v{VOS}, s[{S_OSRD}:{S_OSRD+3}], s56 offen offset:{qt*2048 + pc*512}")
    A(f"""
    s_cmp_ge_u32 s38, 28
    s_cbranch_scc1 {name}_udone
    s_barrier
    """)
    srd(A, S_WSRD, 6, 0, 2048*3584*2)
    srd(A, S_ASRD, 4, WS_HT, HT_BYTES)
    srd(A, 40, 4, WS_U, U_BYTES)
    srd(A, 48, 30, 0, 3584*2)
    VB = 224
    A(f"""
    s_lshl_b32 s{S_N0}, s{S_FT}, 8
    s_lshl_b32 s{S_T0}, s{S_DT}, 3
    v_lshrrev_b32 v{V_EP}, 4, v{V_LANE}
    v_lshlrev_b32 v{V_EP}, 3, v{V_EP}
    s_lshl_b32 s56, s{S_KG}, 7
    s_add_u32 s56, s56, s{S_N0}
    """)
    for x in range(4):
        A(f"buffer_load_dwordx2 v[{VB+2*x}:{VB+2*x+1}], v{V_EP}, s[48:51], s56 offen offset:{x*32}")
    gemm16_setup(A, 7168, S_N0, S_T0, 65536, NSL)
    gemm16_main(A, name + "_u", 7168, 65536, 16, NSL, True)
    gemm16_reduce(A)
    u_epilogue(A, S_FT, S_DT, VB)
    A.label(f"{name}_udone")
    if 'stamp' in EXP:
        stamp_end(A, 4, 1)
    A(f"""
{name}_end:
    s_endpgm
    """)
    return kernel_desc(name, 512, 256, 100)
```

```python
from asmlib import *
from layout import *
def gen_pf(A, name, bufs):
    kernel_begin(A, name)
    A(f"""
    s_cmp_ge_u32 s2, 256
    s_cbranch_scc1 {name}_end
    s_lshl_b32 s3, s2, 15            ; wg*256*128
    v_lshlrev_b32 v1, 7, v0
    v_add_u32 v1, s3, v1
    """)
    for i, (ka, nb) in enumerate(bufs):
        A(f"s_load_dwordx2 s[4:5], s[0:1], {ka}")
        A("s_waitcnt lgkmcnt(0)")
        srd(A, 8, 4, 0, nb)
        n = (nb + (8 << 20) - 1) // (8 << 20)
        for k in range(n):
            A(f"s_mov_b32 s12, {k*(8<<20)}")
            A(f"buffer_load_dword v2, v1, s[8:11], s12 offen")
        A("s_nop 4")
    A(f"""
    s_waitcnt vmcnt(0)
{name}_end:
    s_endpgm
    """)
    return kernel_desc(name, 8, 8, 24)
```

```python
import sys
from asmlib import *
from layout import *
import gen_k0, gen_k2
def build(kernels, path, NSL=4):
    A = Asm()
    launches = []
    descs = []
    if "k0" in kernels:
        descs.append(gen_k0.gen_k0(A)); launches.append(f"; @launch kernel=ln_kernel grid=(256,1,1) block=(512,1,1) lds={gen_k0.LN_LDS}")
    if "pf1" in kernels:
        import gen_pf
        descs.append(gen_pf.gen_pf(A, "pf1_kernel", [(KA_WQ, 8<<20), (KA_W1, 2048*3584*2), (KA_K, 2<<20), (KA_V, 2<<20)])); launches.append("; @launch kernel=pf1_kernel grid=(256,1,1) block=(256,1,1) lds=0")
    if "k1" in kernels:
        import gen_k1
        descs.append(gen_k1.gen_k1(A)); launches.append(f"; @launch kernel=att_kernel grid=(256,1,1) block=(256,1,1) lds={gen_k1.K1_LDS}")
    if "pf2" in kernels:
        import gen_pf
        descs.append(gen_pf.gen_pf(A, "pf2_kernel", [(KA_WO, 8<<20), (KA_W2, 2048*3584*2)])); launches.append("; @launch kernel=pf2_kernel grid=(256,1,1) block=(256,1,1) lds=0")
    if "k2" in kernels:
        descs.append(gen_k2.gen_k2(A, NSL=NSL)); launches.append(f"; @launch kernel=sy_kernel grid=(256,1,1) block=(256,1,1) lds={NSL*32768}")
    txt = HEADER + "\n".join(launches) + "\n" + '.amdgcn_target "amdgcn-amd-amdhsa--gfx950"\n' + A.text() + "".join(descs)
    open(path, "w").write(txt)
if __name__ == "__main__":
    build(sys.argv[2].split(","), sys.argv[1], NSL=int(sys.argv[3]) if len(sys.argv) > 3 else 4)
```
